```python
import torch

def _softmax(x, axis=-1):
    return torch.softmax(x, dim=axis)
def _gelu(x):
    return torch.nn.functional.gelu(x, approximate="tanh")
def _silu(x):
    return torch.nn.functional.silu(x)
def _sigmoid(x):
    return torch.sigmoid(x)
def _layernorm(x, axis=-1, eps=1e-5):
    m = x.mean(dim=axis, keepdim=True)
    v = x.var(dim=axis, keepdim=True, unbiased=False)
    return (x - m) / torch.sqrt(v + eps)
def _scatter_add(tgt, idx, src, axis=0):
    return tgt.clone().index_add_(axis, idx, src)
def _segment_sum(src, seg, n):
    out = torch.zeros((n,) + src.shape[1:], dtype=src.dtype)
    return out.index_add_(0, seg, src)
def _pad(x, pw):
    flat = tuple(v for pair in reversed(pw) for v in pair)
    return torch.nn.functional.pad(x, flat)

kernel_name = 'gated_mix__sliding_local_dilated__dense_activation_gelu__prompt'

def setup_inputs():

    _w = (lambda a: (lambda t: t.to(torch.bfloat16) if t.is_floating_point() else t)(torch.as_tensor(a)))
    def _A_setup():
        B, S, D = 1, 2048, 640
        return {
            "x": _w((lambda *s: torch.randn(*s, dtype=torch.bfloat16) * 0.05)(B, S, D)),
            "wqkv": _w((lambda *s: torch.randn(*s, dtype=torch.bfloat16) * 0.8)(D, 3 * D)),
            "wo": _w((lambda *s: torch.randn(*s, dtype=torch.bfloat16) * 0.05)(D, D)),
        }
    _A_in = _A_setup()

    def _B_setup():
        B, S, D, F = 1, 2048, 640, 1536
        return {
            "x": _w((lambda *s: torch.randn(*s, dtype=torch.bfloat16) * 0.05)(B, S, D)),
            "w1": _w((lambda *s: torch.randn(*s, dtype=torch.bfloat16) * 12.8)(D, F) * (D ** -0.5)),
            "b1": _w((lambda *s: torch.randn(*s, dtype=torch.bfloat16) * 12.8)(F) * 0.01),
            "w2": _w((lambda *s: torch.randn(*s, dtype=torch.bfloat16) * 1.6)(F, D) * (F ** -0.5)),
            "b2": _w((lambda *s: torch.randn(*s, dtype=torch.bfloat16) * 12.8)(D) * 0.01),
        }
    _B_in = _B_setup()

    return {
        "A_x": _A_in["x"],
        "A_wqkv": _A_in["wqkv"],
        "A_wo": _A_in["wo"],
        "B_x": _B_in["x"],
        "B_w1": _B_in["w1"],
        "B_b1": _B_in["b1"],
        "B_w2": _B_in["w2"],
        "B_b2": _B_in["b2"],
        "gate_w": _w((lambda *s: torch.randn(*s, dtype=torch.bfloat16) * 0.05)(640) * 16.0),
    }

def reference(A_x, A_wqkv, A_wo, B_x, B_w1, B_b1, B_w2, B_b2, gate_w):
    def _A_ref(x, wqkv, wo):
        B, S, D = x.shape
        H = 32; Dh = D // H
        W, dil = 8, 2
        qkv = (lambda x, *d: x.permute(*d))((x @ wqkv).reshape(B, S, 3, H, Dh), 2, 0, 3, 1, 4)
        q, k, v = qkv[0], qkv[1], qkv[2]
        scale = Dh ** -0.5
        pos = torch.arange(S)
        off = torch.arange(W) * dil
        idx = pos[:, None] - off[None, :]
        mask = idx >= 0
        idx_c = torch.where(mask, idx, 0).reshape(-1)
        kg = k[:, :, idx_c, :].reshape(B, H, S, W, Dh)
        vg = v[:, :, idx_c, :].reshape(B, H, S, W, Dh)
        logits = torch.einsum("bhsd,bhswd->bhsw", q, kg) * scale
        logits = torch.where(mask[None, None, :, :], logits, -1e9)
        attn = _softmax(logits, axis=-1)
        o = torch.einsum("bhsw,bhswd->bhsd", attn, vg)
        return (lambda x, *d: x.permute(*d))(o, 0, 2, 1, 3).reshape(B, S, D) @ wo

    def _B_ref(x, w1, b1, w2, b2):
        h = torch.einsum("bsd,df->bsf", x, w1) + b1
        h = _gelu(h)
        return torch.einsum("bsf,fd->bsd", h, w2) + b2

    x = A_x
    g = _sigmoid((x * gate_w).sum(-1, keepdims=True))
    a = _A_ref(x, A_wqkv, A_wo)
    b = _B_ref(x, B_w1, B_b1, B_w2, B_b2)
    return g * a + (1 - g) * b
```

```python
TS_OFF = 200 << 20
class Asm:
    def __init__(self):
        self.L = []
        self.kern = []
        self.launch = []
        self.uid = 0
    def __call__(self, s):
        for ln in s.strip("\n").split("\n"):
            self.L.append("  " + ln.strip() if not ln.strip().endswith(":") else ln.strip())
    def label(self, p="L"):
        self.uid += 1
        return f"{p}_{self.uid}"
    def begin(self, name, grid, block, lds, vgpr=256, agpr=0, sgpr=102):
        self.launch.append(f"; @launch kernel={name} grid=({grid},1,1) block=({block},1,1) lds={lds}")
        acc = (vgpr + 3) // 4 * 4
        self.kern.append((name, acc + agpr, acc, sgpr))
        self.L += [f".globl {name}", ".p2align 8", f".type {name},@function", f"{name}:"]
    def text(self, header=""):
        out = []
        out += self.launch
        if header: out.append(header)
        out += ['.amdgcn_target "amdgcn-amd-amdhsa--gfx950"', ".text"]
        out += self.L
        out += ['.section .rodata,"a"']
        for name, nv, acc, sg in self.kern:
            out += [".p2align 6", f".amdhsa_kernel {name}", f"  .amdhsa_next_free_vgpr {nv}", f"  .amdhsa_next_free_sgpr {sg}",
                    f"  .amdhsa_accum_offset {acc}", "  .amdhsa_group_segment_fixed_size 0", "  .amdhsa_kernarg_size 96",
                    "  .amdhsa_user_sgpr_count 2", "  .amdhsa_user_sgpr_kernarg_segment_ptr 1", "  .amdhsa_system_sgpr_workgroup_id_x 1",
                    ".end_amdhsa_kernel"]
        return "\n".join(out) + "\n"
    def stamp(self, slot):
        self(f"s_memrealtime s[{88+2*slot}:{89+2*slot}]")
    def dump_stamps(self, nslots, launch_idx, wsp, vtid="v0", tmp=("v250", "v251", "v252", "v253")):
        lb = self.label("nostamp")
        self("s_waitcnt lgkmcnt(0)")
        self("s_cmp_lg_u32 s3, 0")
        self(f"s_cbranch_scc1 {lb}")
        self(f"s_lshl_b32 s84, s2, 6")
        self(f"s_add_u32 s86, s{wsp}, {TS_OFF + launch_idx*65536}")
        self(f"s_addc_u32 s87, s{wsp+1}, 0")
        self(f"s_add_u32 s86, s86, s84")
        self(f"s_addc_u32 s87, s87, 0")
        self(f"s_mov_b64 exec, 1")
        self(f"v_mov_b32 {tmp[2]}, 0")
        for s in range(8):
            if s < nslots:
                self(f"v_mov_b32 {tmp[0]}, s{88+2*s}")
                self(f"v_mov_b32 {tmp[1]}, s{89+2*s}")
            else:
                self(f"v_mov_b32 {tmp[0]}, 0")
                self(f"v_mov_b32 {tmp[1]}, 0")
            t0 = tmp[0][1:]; t1 = tmp[1][1:]
            self(f"global_store_dwordx2 {tmp[2]}, v[{t0}:{t1}], s[86:87] offset:{8*s}")
            self("s_nop 1")
        self(f"{lb}:")
```

```python
import sys, math
from asmlib import *

WS_A = 0
WS_B = 16 << 20
WS_G = 24 << 20
NEGINF = "0xff800000"
SC = " sc1"

class Opt:
    stamps = False
    k2map = 1
    rot = True
    sc = " sc1"
    osc = ""

class LQ:
    def __init__(self, a):
        self.a = a; self.q = []
    def issue(self, tag):
        self.q.append(tag)
        assert len(self.q) <= 15, "too many outstanding lds ops"
    def wait(self, tag):
        if tag not in self.q: return
        last = max(i for i, t in enumerate(self.q) if t == tag)
        n = len(self.q) - 1 - last
        self.a(f"s_waitcnt lgkmcnt({n})")
        self.q = self.q[last + 1:]
    def waitall(self):
        self.a("s_waitcnt lgkmcnt(0)"); self.q = []

def srd(a, dst, lo, add=0, size=0x7fffffff):
    if add:
        a(f"s_add_u32 s{dst}, s{lo}, {add}"); a(f"s_addc_u32 s{dst+1}, s{lo+1}, 0")
        a(f"s_and_b32 s{dst+1}, s{dst+1}, 0xffff")
    else:
        a(f"s_mov_b32 s{dst}, s{lo}"); a(f"s_and_b32 s{dst+1}, s{lo+1}, 0xffff")
    a(f"s_mov_b32 s{dst+2}, {size}"); a(f"s_mov_b32 s{dst+3}, 0x00020000")

def vr(b, n=4, t="v"):
    return f"{t}[{b}:{b+n-1}]"

def mfma(a, d, x, y, c, dt="v", xt="a", yt="a"):
    cs = c if isinstance(c, str) else vr(c, 4, dt)
    a(f"v_mfma_f32_16x16x32_bf16 {vr(d,4,dt)}, {vr(x,4,xt)}, {vr(y,4,yt)}, {cs}")

QST = 49152
QX = 32768
QH = 30720
MST = 40960
MX = 24576
MGATE = 3 * MST
MSIDE = MGATE + 2048
EXB = QST
K1LDS = 3 * QST

def x_voffs(a, dst, tmp):
    t0, t1, t2 = tmp, tmp + 1, tmp + 2
    a(f"v_lshrrev_b32 v{t0}, 3, v1")
    a(f"v_lshrrev_b32 v{t1}, 4, v1")
    a(f"v_and_b32 v{t2}, 7, v1")
    a("s_lshl_b32 s60, s59, 5"); a("s_add_u32 s60, s60, s58")
    a("s_mul_i32 s60, s60, 1280")
    a(f"v_mul_u32_u24 v{t0}, 2560, v{t0}")
    a(f"v_add_u32 v{t0}, s60, v{t0}")
    for s in range(4):
        if s & 1:
            a(f"v_or_b32 v{dst+s}, 4, v{t1}")
            a(f"v_xor_b32 v{dst+s}, v{dst+s}, v{t2}")
        else:
            a(f"v_xor_b32 v{dst+s}, v{t1}, v{t2}")
        a(f"v_lshl_add_u32 v{dst+s}, v{dst+s}, 4, v{t0}")
        add = (16 * (s & 1) + (s >> 1)) * 1280
        if add: a(f"v_add_u32 v{dst+s}, {add}, v{dst+s}")

def x_read_addr(a, d0, d1, region, tmp, wave=True):
    t0, t1 = tmp, tmp + 1
    a(f"v_and_b32 v{t0}, 15, v1")
    a(f"v_lshrrev_b32 v{t1}, 1, v{t0}")
    a(f"v_lshrrev_b32 v{d0}, 4, v1")
    a(f"v_xor_b32 v{d0}, v{d0}, v{t1}")
    a(f"v_lshlrev_b32 v{d0}, 4, v{d0}")
    a(f"v_lshl_add_u32 v{d0}, v{t0}, 7, v{d0}")
    if wave:
        a("s_lshl_b32 s60, s59, 12"); a(f"s_add_u32 s60, s60, {region}")
        a(f"v_add_u32 v{d0}, s60, v{d0}")
    else:
        a(f"v_add_u32 v{d0}, {region}, v{d0}")
    a(f"v_xor_b32 v{d1}, 64, v{d0}")

def slot0(a, d, tmp):
    a(f"v_lshrrev_b32 v{d}, 5, v1"); a(f"v_lshlrev_b32 v{d}, 4, v{d}")
    a(f"v_bfe_u32 v{tmp}, v1, 2, 3")
    a(f"v_add_u32 v{d}, v{d}, v{tmp}")

def adv_stage(a, sreg, st):
    a(f"s_add_u32 s{sreg}, s{sreg}, {st}"); a(f"s_cmp_eq_u32 s{sreg}, {3*st}"); a(f"s_cselect_b32 s{sreg}, 0, s{sreg}")

def adv_kd(a, sreg):
    a(f"s_add_u32 s{sreg}, s{sreg}, 1"); a(f"s_cmp_eq_u32 s{sreg}, 10"); a(f"s_cselect_b32 s{sreg}, 0, s{sreg}")

def k1(a, o):
    a.begin("gm1_kernel", 256, 512, K1LDS, vgpr=208, agpr=48)
    L_exit = "K1_EXIT"
    a("s_cmp_ge_u32 s2, 256"); a(f"s_cbranch_scc1 {L_exit}")
    if o.stamps: a.stamp(0)
    a("s_load_dwordx4 s[4:7], s[0:1], 0")
    a("s_load_dwordx2 s[8:9], s[0:1], 16")
    a("s_load_dwordx8 s[12:19], s[0:1], 32")
    a("s_load_dwordx2 s[20:21], s[0:1], 64")
    a("s_load_dwordx2 s[22:23], s[0:1], 88")
    a("v_and_b32 v1, 63, v0"); a("v_lshrrev_b32 v2, 6, v0")
    a("s_and_b32 s50, s2, 7"); a("s_lshr_b32 s51, s2, 3")
    a("v_readfirstlane_b32 s3, v2")
    a("s_and_b32 s52, s51, 7"); a("s_lshr_b32 s53, s51, 3")
    a("s_and_b32 s54, s50, 1"); a("s_lshl_b32 s54, s54, 3"); a("s_add_u32 s54, s54, s52")
    a("s_and_b32 s55, s50, 6"); a("s_and_b32 s56, s53, 1"); a("s_add_u32 s55, s55, s56")
    if o.rot:
        a("s_mul_i32 s56, s52, 5"); a("s_mul_i32 s57, s53, 10"); a("s_add_u32 s56, s56, s57"); a("s_lshr_b32 s42, s56, 2")
        a("s_sub_u32 s56, s42, 10"); a("s_cmp_ge_u32 s42, 10"); a("s_cselect_b32 s42, s56, s42")
    else:
        a("s_mov_b32 s42, 0")
    a("s_lshl_b32 s58, s54, 7")
    a("s_and_b32 s59, s3, 3")
    a("s_cmp_ge_u32 s53, 2"); a("s_cbranch_scc1 K1_MLP")
    a("s_cmp_ge_u32 s3, 4"); a("s_cbranch_scc1 K1_QL")
    qkv_consumer(a, o)
    a("K1_QL:")
    qkv_loader(a, o)
    a("K1_MLP:")
    a("s_cmp_ge_u32 s3, 4"); a("s_cbranch_scc1 K1_ML")
    mlp_consumer(a, o)
    a("K1_ML:")
    mlp_loader(a, o)
    a(f"{L_exit}:"); a("s_endpgm")

def gemm_stage(a, ntile, wread, xaddr, acc, wfirst, D=6, XB=24):
    lq = LQ(a)
    def rdx(half, p):
        a(f"ds_read_b128 {vr(XB+(half*2+p)*4,4,'a')}, v{xaddr[half]} offset:{p*2048}"); lq.issue(("x", half, p))
    def rdw(f):
        half, T = divmod(f, ntile)
        for h in range(2):
            va, imm = wread(half, h, T)
            a(f"ds_read_b64_tr_b16 {vr((f%D)*4+2*h,2,'a')}, v{va} offset:{imm}"); lq.issue(("w", f))
    nf = 2 * ntile
    rdx(0, 0); rdw(0); rdx(0, 1)
    for f in range(1, D): rdw(f)
    for f in range(nf):
        half, T = divmod(f, ntile)
        lq.wait(("w", f))
        if T == 0: lq.wait(("x", half, 0))
        for p in range(2):
            if T == 0 and p == 1: lq.wait(("x", half, 1))
            W = (f % D) * 4; X = XB + (half * 2 + p) * 4
            if wfirst(T): mfma(a, acc(p, T), W, X, acc(p, T))
            else: mfma(a, acc(p, T), X, W, acc(p, T))
        if f + D < nf:
            rdw(f + D)
        if f == ntile - D - 1: rdx(1, 0)
        if f == ntile - D: rdx(1, 1)

def qkv_consumer(a, o):
    ACC = lambda p, T: 8 + (p * 15 + T) * 4
    QM = lambda p, h: 128 + p * 16 + h * 4
    KP = [160, 48]; VP = lambda p, T: (28 if p == 0 else 88) + 4 * T
    KQ = [108, 118]
    BO = 170; BP = [174, 178]; MO = 182; ONES = 184
    OWN = [[8, 12, 16, 20], [24, 84, 58, 62]]
    PRV = [[68, 72, 76, 80], [188, 192, 196, 200]]
    slot0(a, 2, 5)
    a("v_mul_u32_u24 v2, 480, v2"); a("v_and_b32 v5, 3, v1"); a("v_lshl_add_u32 v2, v5, 3, v2")
    x_read_addr(a, 3, 4, QX, 5)
    for r in range(8, 160): a(f"v_mov_b32 v{r}, 0")
    for r in range(4): a(f"v_mov_b32 v{ONES+r}, 0x3f803f80")
    a("v_and_b32 v5, 15, v1"); a("v_lshrrev_b32 v6, 4, v1"); a("v_lshlrev_b32 v6, 2, v6")
    a("s_mov_b32 s60, 9"); a("s_mov_b32 s61, 15"); a("s_mov_b32 s62, 9")
    a("s_cmp_eq_u32 s59, 0"); a("s_cselect_b32 s60, 1, s60"); a("s_cselect_b32 s61, 7, s61")
    a("s_or_b32 s63, s59, s58"); a("s_cmp_eq_u32 s63, 0"); a("s_cselect_b32 s60, 99, s60"); a("s_cselect_b32 s62, 99, s62")
    a(f"v_mov_b32 v{MO}, 0"); a(f"v_mov_b32 v{MO+1}, 0"); a(f"v_mov_b32 v204, {NEGINF}")
    for r in range(4):
        a(f"v_add_u32 v7, {r}, v6")
        a("v_sub_u32 v205, v5, v7")
        a("v_cmp_ge_u32 vcc, 7, v205")
        a("v_sub_u32 v206, v7, v5")
        a(f"v_mov_b32 v207, {'0xffff' if r % 2 == 0 else '0xffff0000'}")
        a(f"v_cndmask_b32 v{BO+r}, v204, 0, vcc")
        a(f"v_cndmask_b32 v207, 0, v207, vcc")
        a(f"v_or_b32 v{MO+r//2}, v{MO+r//2}, v207")
        a("v_cmp_le_i32 vcc, s60, v206"); a("v_cmp_ge_i32 s[64:65], s61, v7"); a("s_nop 0"); a("s_and_b64 vcc, vcc, s[64:65]")
        a("s_nop 1")
        a(f"v_cndmask_b32 v{BP[0]+r}, v204, 0, vcc")
        a("v_cmp_le_i32 vcc, s62, v206"); a("s_nop 1")
        a(f"v_cndmask_b32 v{BP[1]+r}, v204, 0, vcc")
    a("s_mov_b32 s66, 0xffff0000"); a("s_mov_b32 s67, -1"); a("s_mov_b32 s68, 0"); a("s_mov_b32 s69, -1")
    a("s_mov_b32 s70, 0"); a("s_mov_b32 s71, 0xffff0000")
    for T in range(3): a(f"s_not_b64 s[{72+2*T}:{73+2*T}], s[{66+2*T}:{67+2*T}]")
    HI = lambda T: "-1" if T == 0 else f"s[{64+2*T}:{65+2*T}]"
    LO = lambda T: "-1" if T == 4 else f"s[{70+2*T}:{71+2*T}]"
    a("s_waitcnt lgkmcnt(0)")
    srd(a, 24, 22, WS_A, 32 * 68 * 4096)
    a("s_lshl_b32 s36, s54, 1"); a("s_lshr_b32 s37, s59, 1"); a("s_add_u32 s36, s36, s37"); a("s_mul_i32 s36, s36, 68")
    a("s_mul_i32 s37, s55, 5"); a("s_lshr_b32 s37, s37, 1"); a("s_add_u32 s36, s36, s37"); a("s_lshl_b32 s36, s36, 12")
    a("s_and_b32 s37, s59, 1"); a("s_lshl_b32 s37, s37, 11"); a("s_add_u32 s36, s36, s37")
    a("s_add_u32 s37, s36, 4096"); a("s_add_u32 s38, s36, 8192")
    a("s_mov_b32 s47, 0"); a("s_mov_b32 s48, 10")
    a("v_mov_b32 v5, v2"); a("v_mov_b32 v6, v3"); a("v_mov_b32 v7, v4")
    a("QC_LOOP:")
    a("s_barrier")
    gemm_stage(a, 15, lambda half, h, T: (5, half * 15360 + h * 3840 + T * 32), [6, 7], ACC, lambda T: T < 10)
    adv_stage(a, 47, QST)
    a("v_add_u32 v5, s47, v2"); a("v_add_u32 v6, s47, v3"); a("v_add_u32 v7, s47, v4")
    a("s_sub_u32 s48, s48, 1"); a("s_cmp_lg_u32 s48, 0"); a("s_cbranch_scc1 QC_LOOP")
    if o.stamps: a.stamp(1)
    def pack(dst, src):
        a(f"v_cvt_pk_bf16_f32 v{dst}, v{src}, v{src+1}"); a(f"v_cvt_pk_bf16_f32 v{dst+1}, v{src+2}, v{src+3}")
    a("s_mul_i32 s60, s59, 10240"); a(f"s_add_u32 s60, s60, {EXB}")
    a("v_lshl_add_u32 v6, v1, 3, s60"); a("v_add_u32 v5, 10240, v6")
    a("v_lshlrev_b32 v7, 4, v1")
    a("s_nop 4")
    lq = LQ(a)
    skipw = a.label("QC_NOW")
    for p in range(2):
        for T in range(5): pack(KP[p] + 2 * T, ACC(p, 5 + T))
        for T in range(5): pack(VP(p, T), ACC(p, 10 + T))
    a("s_cmp_eq_u32 s59, 3"); a(f"s_cbranch_scc1 {skipw}")
    for p in range(2):
        for T in range(5): a(f"ds_write_b64 v5, {vr(KP[p]+2*T,2)} offset:{p*5120+T*512}")
        for T in range(5): a(f"ds_write_b64 v5, {vr(VP(p,T),2)} offset:{p*5120+2560+T*512}")
    a(f"{skipw}:")
    for T in range(5):
        if T <= 3:
            a(f"s_mov_b64 exec, {HI(T)}")
            for p in range(2): pack(QM(p, T), ACC(p, T))
        if T >= 1:
            a(f"s_mov_b64 exec, {LO(T)}")
            for p in range(2): pack(QM(p, T - 1) + 2, ACC(p, T))
    a("s_mov_b64 exec, -1")
    a("s_nop 1")
    for p in range(2):
        for h in range(4): mfma(a, OWN[p][h], KP[p] + 2 * h, QM(p, h), BO, xt="v", yt="v")
    a("s_waitcnt lgkmcnt(0)"); a("s_barrier")
    for p in range(2):
        for T in range(5): a(f"ds_read_b64 {vr(KQ[p]+2*T,2)}, v6 offset:{p*5120+T*512}"); lq.issue(("k", p))
    for p in range(2):
        for T in range(5):
            if p == 1 and T == 0: lq.wait(("k", 0))
            a(f"ds_read_b64 {vr(VP(p,T)+2,2)}, v6 offset:{p*5120+2560+T*512}"); lq.issue(("v", p))
    for p in range(2):
        lq.wait(("k", p))
        for h in range(4): mfma(a, PRV[p][h], KQ[p] + 2 * h, QM(p, h), BP[p], xt="v", yt="v")
    a("s_nop 7")
    MXA = [160 + i for i in range(8)]
    MXB = [48 + i for i in range(8)]
    for p in range(2):
        for h in range(4):
            for r in range(4): a(f"v_max_f32 v{OWN[p][h]+r}, v{OWN[p][h]+r}, v{PRV[p][h]+r}")
    for p in range(2):
        for h in range(4):
            b = OWN[p][h]
            a(f"v_max3_f32 v{MXA[p*4+h]}, v{b}, v{b+1}, v{b+2}")
    for p in range(2):
        for h in range(4):
            a(f"v_max_f32 v{MXA[p*4+h]}, v{MXA[p*4+h]}, v{OWN[p][h]+3}")
    a("s_nop 1")
    A_ = MXA
    for k in range(4): a(f"v_permlane32_swap_b32 v{A_[2*k]}, v{A_[2*k+1]}")
    a("s_nop 0")
    for k in range(4): a(f"v_max_f32 v{A_[2*k]}, v{A_[2*k]}, v{A_[2*k+1]}")
    a("s_nop 1")
    for k in range(2): a(f"v_permlane16_swap_b32 v{A_[4*k]}, v{A_[4*k+2]}")
    a("s_nop 1")
    for k in range(2): a(f"v_max_f32 v{A_[4*k]}, v{A_[4*k]}, v{A_[4*k+2]}")
    a(f"s_mov_b32 s60, {hex(f32bits(20 ** -0.5 * math.log2(math.e)))}")
    for k in range(2): a(f"v_mul_f32 v{A_[4*k]}, s60, v{A_[4*k]}")
    for k in range(2): a(f"v_mov_b32 v{A_[4*k+2]}, v{A_[4*k]}")
    a("s_nop 1")
    for k in range(2): a(f"v_permlane16_swap_b32 v{A_[4*k]}, v{A_[4*k+2]}")
    a("s_nop 1")
    for k in range(4): a(f"v_mov_b32 v{A_[2*k+1]}, v{A_[2*k]}")
    a("s_nop 1")
    for k in range(4): a(f"v_permlane32_swap_b32 v{A_[2*k]}, v{A_[2*k+1]}")
    a("s_nop 1")
    for p in range(2):
        for h in range(4):
            for r in range(4): a(f"v_fma_f32 v{OWN[p][h]+r}, v{OWN[p][h]+r}, s60, -v{A_[p*4+h]}")
    for p in range(2):
        for h in range(4):
            for r in range(4): a(f"v_exp_f32 v{OWN[p][h]+r}, v{OWN[p][h]+r}")
    for p in range(2):
        for h in range(4): pack(OWN[p][h], OWN[p][h])
    for p in range(2):
        for h in range(4):
            for k in range(2):
                a(f"v_and_b32 v{PRV[p][h]+k}, v{OWN[p][h]+k}, v{MO+k}")
                a(f"v_bfi_b32 v{PRV[p][h]+2+k}, v{MO+k}, 0, v{OWN[p][h]+k}")
    lq.waitall()
    a("s_nop 0")
    OH = [[128 + 4 * T for T in range(4)], [108, 112, 116, 120]]
    OL = [[None] + [144 + 4 * (T - 1) for T in range(1, 5)], [None, 124, 160, 164, 204]]
    for p in range(2):
        for h in range(4): mfma(a, OWN[p][h], ONES, PRV[p][h], "0", xt="v", yt="v")
    for p in range(2):
        for T in range(5):
            if T <= 3: mfma(a, OH[p][T], VP(p, T), PRV[p][T], "0", xt="v", yt="v")
            if T >= 1: mfma(a, OL[p][T], VP(p, T), PRV[p][T - 1], "0", xt="v", yt="v")
    for p in range(2):
        for h in range(4): a(f"v_rcp_f32 v{OWN[p][h]}, v{OWN[p][h]}")
    a("s_nop 4")
    OUT = lambda p, T: OH[p][T] if T <= 3 else OL[p][4]
    for T in range(5):
        if T <= 3:
            a(f"s_mov_b64 exec, {HI(T)}")
            for p in range(2):
                for r in range(4): a(f"v_mul_f32 v{OUT(p,T)+r}, v{OH[p][T]+r}, v{OWN[p][T]}")
        if T >= 1:
            a(f"s_mov_b64 exec, {LO(T)}")
            for p in range(2):
                for r in range(4): a(f"v_mul_f32 v{OUT(p,T)+r}, v{OL[p][T]+r}, v{OWN[p][T-1]}")
    a("s_mov_b64 exec, -1")
    odd = a.label("QC_ODD"); done = a.label("QC_DONE")
    a("s_and_b32 s60, s55, 1"); a("s_cmp_eq_u32 s60, 1"); a(f"s_cbranch_scc1 {odd}")
    def fin(pairs, single, skap, shalf):
        for p in range(2):
            for (T0, kap) in pairs:
                d = OUT(p, T0)
                pack(d, d); pack(d + 2, OUT(p, T0 + 1))
                a(f"buffer_store_dwordx4 {vr(d)}, v7, s[24:27], s{36+kap} offen offset:{p*1024}{o.sc}")
            d = OUT(p, single); pack(d, d)
            a(f"buffer_store_dwordx2 {vr(d,2)}, v7, s[24:27], s{36+skap} offen offset:{p*1024+shalf*8}{o.sc}")
    fin([(0, 0), (2, 1)], 4, 2, 0)
    a(f"s_branch {done}")
    a(f"{odd}:")
    fin([(1, 1), (3, 2)], 0, 0, 1)
    a(f"{done}:")
    if o.stamps:
        a.stamp(2); a("s_waitcnt vmcnt(0)"); a.stamp(3)
        a.dump_stamps(4, 0, 22, vtid="v0", tmp=("v8", "v9", "v10", "v11"))
    a("s_endpgm")

def f32bits(x):
    import struct
    return struct.unpack("<I", struct.pack("<f", x))[0]

def qkv_loader(a, o):
    x_voffs(a, 16, 2)
    def wv(dst, s):
        a(f"s_lshl_b32 s60, s59, 8"); a(f"s_add_u32 s60, s60, {s*64}")
        a(f"v_add_u32 v2, s60, v1")
        a("v_mul_u32_u24 v3, 2185, v2"); a("v_lshrrev_b32 v3, 16, v3")
        a("v_mul_u32_u24 v4, 30, v3"); a("v_sub_u32 v4, v2, v4")
        a("v_mul_u32_u24 v5, 205, v4"); a("v_lshrrev_b32 v5, 11, v5")
        a("v_and_b32 v6, 0x13, v3"); a("v_and_b32 v7, 4, v3"); a("v_lshl_or_b32 v6, v7, 1, v6")
        a("v_bfe_u32 v7, v3, 3, 1"); a("v_lshl_or_b32 v6, v7, 2, v6")
        a("v_mul_u32_u24 v6, 3840, v6"); a("v_mul_u32_u24 v5, 1120, v5")
        a("v_lshl_add_u32 v6, v4, 4, v6"); a("v_add_u32 v6, v6, v5")
        a(f"v_add_u32 v{dst}, s61, v6")
    a("s_mul_i32 s61, s55, 160")
    for s in range(3): wv(10 + s, s)
    hl = a.label("QL_H"); hd = a.label("QL_HD")
    a("s_cmp_eq_u32 s59, 3"); a(f"s_cbranch_scc1 {hl}")
    wv(13, 3); a("v_mov_b32 v14, v13")
    a(f"s_branch {hd}")
    a(f"{hl}:")
    a("v_lshrrev_b32 v2, 3, v1"); a("v_lshlrev_b32 v2, 1, v2"); a("s_sub_u32 s60, s58, 16"); a("v_add_u32 v2, s60, v2")
    a("v_lshrrev_b32 v3, 4, v1"); a("v_and_b32 v4, 7, v1")
    for e in range(2):
        a(f"v_add_u32 v5, {e}, v2"); a("v_max_i32 v5, 0, v5"); a("v_mul_u32_u24 v5, 1280, v5")
        a(f"v_or_b32 v6, {4*e}, v3"); a("v_xor_b32 v6, v6, v4"); a(f"v_lshl_add_u32 v{13+e}, v6, 4, v5")
    a(f"{hd}:")
    a("s_waitcnt lgkmcnt(0)")
    srd(a, 24, 6, 0, 640 * 3840); srd(a, 28, 4, 0, 2048 * 1280)
    a("s_cmp_eq_u32 s59, 3")
    for k in range(4): a(f"s_cselect_b32 s{32+k}, s{28+k}, s{24+k}")
    a("s_lshl_b32 s45, s59, 12")
    a(f"s_add_u32 s46, s45, {QX}")
    a("s_add_u32 s43, s45, 3072"); a("s_add_u32 s44, s45, 18432")
    a("s_cmp_eq_u32 s59, 3"); a(f"s_cselect_b32 s43, {QH}, s43"); a(f"s_cselect_b32 s44, {QH+1024}, s44")
    a("s_mov_b32 s41, 0")
    def issue():
        a("s_mul_i32 s36, s42, 245760"); a("s_add_u32 s37, s36, 122880"); a("s_lshl_b32 s38, s42, 7")
        a("s_cmp_eq_u32 s59, 3"); a("s_cselect_b32 s39, s38, s36"); a("s_cselect_b32 s40, s38, s37")
        a("s_add_u32 s49, s41, s46")
        for s in range(4):
            a(f"s_add_u32 m0, s49, {s*1024}"); a("s_nop 0")
            a(f"buffer_load_dwordx4 v{16+s}, s[28:31], s38 offen lds")
        a("s_add_u32 s49, s41, s45")
        for s in range(3):
            a(f"s_add_u32 m0, s49, {s*1024}"); a("s_nop 0")
            a(f"buffer_load_dwordx4 v{10+s}, s[24:27], s36 offen lds")
        a("s_add_u32 m0, s41, s43"); a("s_nop 0"); a("buffer_load_dwordx4 v13, s[32:35], s39 offen lds")
        for s in range(3):
            a(f"s_add_u32 m0, s49, {s*1024+15360}"); a("s_nop 0")
            a(f"buffer_load_dwordx4 v{10+s}, s[24:27], s37 offen lds")
        a("s_add_u32 m0, s41, s44"); a("s_nop 0"); a("buffer_load_dwordx4 v14, s[32:35], s40 offen lds")
        adv_kd(a, 42); adv_stage(a, 41, QST)
    issue(); issue()
    slot0(a, 20, 2)
    a("v_mul_u32_u24 v20, 480, v20"); a("v_and_b32 v2, 3, v1"); a("v_lshl_add_u32 v20, v2, 3, v20")
    a("s_and_b32 s60, s59, 1"); a("s_mul_i32 s60, s60, 160"); a("s_add_u32 s60, s60, 288"); a("v_add_u32 v21, s60, v20")
    a("s_lshl_b32 s60, s59, 5"); a("s_add_u32 s60, s60, 160"); a("v_add_u32 v20, s60, v20")
    x_read_addr(a, 22, 23, QH, 2, wave=False)
    for r in range(32, 48): a(f"v_mov_b32 v{r}, 0")
    a("s_mov_b32 s47, 0")
    def halo():
        a("v_add_u32 v24, s47, v20"); a("v_add_u32 v25, s47, v21"); a("v_add_u32 v26, s47, v22"); a("v_add_u32 v27, s47, v23")
        lq = LQ(a)
        for half in range(2):
            b = half * 16
            a(f"ds_read_b128 {vr(b+12,4,'a')}, v{26+half}"); lq.issue(half)
            for h in range(2):
                im = half * 15360 + h * 3840
                a(f"ds_read_b64_tr_b16 {vr(b+2*h,2,'a')}, v24 offset:{im}"); lq.issue(half)
                a(f"ds_read_b64_tr_b16 {vr(b+4+2*h,2,'a')}, v24 offset:{im+160}"); lq.issue(half)
                a(f"ds_read_b64_tr_b16 {vr(b+8+2*h,2,'a')}, v25 offset:{im}"); lq.issue(half)
        for half in range(2):
            b = half * 16
            lq.wait(half)
            mfma(a, 32, b, b + 12, 32); mfma(a, 36, b + 12, b + 4, 36); mfma(a, 40, b + 8, b + 12, 40); mfma(a, 44, b + 12, b + 8, 44)
        adv_stage(a, 47, QST)
    a("s_mov_b32 s48, 8")
    a("QL_LOOP:")
    a("s_waitcnt vmcnt(12)"); a("s_barrier")
    issue(); halo()
    a("s_sub_u32 s48, s48, 1"); a("s_cmp_lg_u32 s48, 0"); a("s_cbranch_scc1 QL_LOOP")
    a("s_waitcnt vmcnt(12)"); a("s_barrier"); halo()
    a("s_waitcnt vmcnt(0)"); a("s_barrier"); halo()
    a("s_lshl_b32 s60, s59, 9"); a(f"s_add_u32 s60, s60, {EXB}")
    a("v_lshl_add_u32 v2, v1, 3, s60")
    a(f"v_lshlrev_b32 v3, 3, v1"); a(f"v_add_u32 v3, {EXB}, v3")
    a("s_nop 4")
    for k in range(4):
        b = 32 + 4 * k
        a(f"v_cvt_pk_bf16_f32 v{b}, v{b}, v{b+1}"); a(f"v_cvt_pk_bf16_f32 v{b+1}, v{b+2}, v{b+3}")
    for p in range(2):
        a(f"ds_write_b64 v2, v[32:33] offset:{p*5120}")
        a(f"ds_write_b64 v2, v[36:37] offset:{p*5120+2560}")
    l1 = a.label("QL_C"); l2 = a.label("QL_C")
    a("s_cmp_lg_u32 s59, 0"); a(f"s_cbranch_scc1 {l1}")
    for p in range(2): a(f"ds_write_b64 v3, v[40:41] offset:{p*5120+2048}")
    a(f"{l1}:")
    a("s_cmp_lg_u32 s59, 1"); a(f"s_cbranch_scc1 {l2}")
    for p in range(2): a(f"ds_write_b64 v3, v[44:45] offset:{p*5120+2560+2048}")
    a(f"{l2}:")
    a("s_waitcnt lgkmcnt(0)"); a("s_barrier")
    a("s_endpgm")

def mlp_consumer(a, o):
    ACC = lambda p, T: 16 + (p * 12 + T) * 4
    slot0(a, 8, 9)
    a("v_bfe_u32 v9, v8, 1, 2")
    a("v_mul_u32_u24 v8, 384, v8"); a("v_and_b32 v10, 3, v1"); a("v_lshl_add_u32 v8, v10, 3, v8")
    for b in range(4):
        a(f"v_xor_b32 v10, {b}, v9"); a(f"v_lshl_add_u32 v{2+b}, v10, 5, v8")
    x_read_addr(a, 6, 7, MX, 9)
    a("s_waitcnt lgkmcnt(0)")
    srd(a, 28, 14, 0, 3072)
    a("v_lshrrev_b32 v9, 4, v1"); a("v_lshlrev_b32 v9, 3, v9"); a("s_mul_i32 s60, s55, 384")
    for T in range(12):
        a(f"buffer_load_dwordx2 {vr(ACC(1,T),2)}, v9, s[28:31], s60 offen offset:{T*32}")
    srd(a, 24, 22, WS_A, 32 * 68 * 4096)
    a("s_lshl_b32 s36, s54, 1"); a("s_lshr_b32 s37, s59, 1"); a("s_add_u32 s36, s36, s37"); a("s_mul_i32 s36, s36, 68")
    a("s_mul_i32 s37, s55, 6"); a("s_add_u32 s37, s37, 20"); a("s_add_u32 s36, s36, s37"); a("s_lshl_b32 s36, s36, 12")
    a("s_and_b32 s37, s59, 1"); a("s_lshl_b32 s37, s37, 11"); a("s_add_u32 s36, s36, s37")
    for k in range(1, 6): a(f"s_add_u32 s{36+k}, s36, {4096*k}")
    for k in range(6): a(f"v_mov_b32 v{8+k}, v{2+k}")
    a("v_lshlrev_b32 v14, 4, v1")
    a("s_waitcnt vmcnt(0)")
    for T in range(12):
        s = ACC(1, T); d = ACC(0, T)
        a(f"v_lshlrev_b32 v{d}, 16, v{s}"); a(f"v_and_b32 v{d+1}, 0xffff0000, v{s}")
        a(f"v_lshlrev_b32 v{d+2}, 16, v{s+1}"); a(f"v_and_b32 v{d+3}, 0xffff0000, v{s+1}")
        for r in range(4): a(f"v_mov_b32 v{s+r}, v{d+r}")
    a("s_mov_b32 s47, 0"); a("s_mov_b32 s48, 10")
    a("MC_LOOP:")
    a("s_barrier")
    gemm_stage(a, 12, lambda half, h, T: (8 + (T & 3), half * 12288 + h * 3072 + (T >> 2) * 128), [12, 13], ACC, lambda T: True)
    adv_stage(a, 47, MST)
    for k in range(6): a(f"v_add_u32 v{8+k}, s47, v{2+k}")
    a("s_sub_u32 s48, s48, 1"); a("s_cmp_lg_u32 s48, 0"); a("s_cbranch_scc1 MC_LOOP")
    if o.stamps: a.stamp(1)
    c1 = -2.0 * math.sqrt(2.0 / math.pi) * math.log2(math.e)
    c2 = c1 * 0.044715
    a(f"s_mov_b32 s60, {hex(f32bits(c1))}"); a(f"s_mov_b32 s61, {hex(f32bits(c2))}")
    a("v_mov_b32 v15, s60")
    a("s_nop 4")
    TMP = 112
    for p in range(2):
        for kp in range(6):
            z = [ACC(p, 2 * kp) + r for r in range(8)]
            t = [TMP + ((p * 6 + kp) % 2) * 8 + r for r in range(8)]
            for r in range(8): a(f"v_mul_f32 v{t[r]}, v{z[r]}, v{z[r]}")
            for r in range(8): a(f"v_fma_f32 v{t[r]}, v{t[r]}, s61, v15")
            for r in range(8): a(f"v_mul_f32 v{t[r]}, v{t[r]}, v{z[r]}")
            for r in range(8): a(f"v_exp_f32 v{t[r]}, v{t[r]}")
            for r in range(8): a(f"v_add_f32 v{t[r]}, 1.0, v{t[r]}")
            for r in range(8): a(f"v_rcp_f32 v{t[r]}, v{t[r]}")
            for r in range(8): a(f"v_mul_f32 v{z[r]}, v{z[r]}, v{t[r]}")
            for k in range(4): a(f"v_cvt_pk_bf16_f32 v{z[k]}, v{z[2*k]}, v{z[2*k+1]}")
            a(f"buffer_store_dwordx4 {vr(z[0])}, v14, s[24:27], s{36+kp} offen offset:{p*1024}{o.sc}")
    if o.stamps:
        a.stamp(2); a("s_waitcnt vmcnt(0)"); a.stamp(3)
        a.dump_stamps(4, 0, 22, vtid="v0", tmp=("v8", "v9", "v10", "v11"))
    a("s_endpgm")

def mlp_loader(a, o):
    x_voffs(a, 16, 2)
    a("s_mul_i32 s61, s55, 384"); a("s_mul_i32 s60, s59, 49152"); a("s_add_u32 s61, s61, s60")
    for b in range(3):
        a(f"v_add_u32 v2, {64*b}, v1")
        a("v_mul_u32_u24 v3, 2731, v2"); a("v_lshrrev_b32 v3, 16, v3")
        a("v_mul_u32_u24 v4, 24, v3"); a("v_sub_u32 v4, v2, v4")
        a("v_and_b32 v5, 6, v3"); a("v_xor_b32 v4, v4, v5")
        a("v_and_b32 v6, 3, v3"); a("v_and_b32 v7, 4, v3"); a("v_lshl_or_b32 v6, v7, 1, v6")
        a("v_mul_u32_u24 v6, 3072, v6"); a("v_lshl_add_u32 v6, v4, 4, v6")
        a(f"v_add_u32 v{10+b}, s61, v6")
    a("v_lshlrev_b32 v9, 4, v1")
    a("s_waitcnt lgkmcnt(0)")
    srd(a, 24, 12, 0, 640 * 3072); srd(a, 28, 4, 0, 2048 * 1280); srd(a, 32, 20, 0, 1280)
    a("s_mul_i32 s45, s59, 6144"); a("s_lshl_b32 s46, s59, 12"); a(f"s_add_u32 s46, s46, {MX}")
    a("s_mov_b32 s41, 0"); a("s_mov_b32 s43, s42")
    a("s_and_b32 s60, s59, 1"); a("s_lshl_b32 s60, s60, 10"); a("v_add_u32 v8, s60, v9"); a("v_min_u32 v8, 1264, v8")
    a(f"s_add_u32 m0, s60, {MGATE}"); a("s_nop 0")
    a("buffer_load_dwordx4 v8, s[32:35], 0 offen lds")
    def issue():
        a("s_mul_i32 s36, s42, 196608"); a("s_add_u32 s37, s36, 12288"); a("s_lshl_b32 s38, s42, 7")
        a("s_add_u32 s49, s41, s46")
        for s in range(4):
            a(f"s_add_u32 m0, s49, {s*1024}"); a("s_nop 0")
            a(f"buffer_load_dwordx4 v{16+s}, s[28:31], s38 offen lds")
        a("s_add_u32 s49, s41, s45")
        for e in range(2):
            for b in range(3):
                a(f"s_add_u32 m0, s49, {(3*e+b)*1024}"); a("s_nop 0")
                a(f"buffer_load_dwordx4 v{10+b}, s[24:27], s{36+e} offen lds")
        adv_kd(a, 42); adv_stage(a, 41, MST)
    issue(); issue()
    x_read_addr(a, 22, 23, MX, 2)
    a("v_lshrrev_b32 v20, 4, v1"); a("v_lshlrev_b32 v20, 4, v20"); a(f"v_add_u32 v20, {MGATE}, v20")
    for r in range(32, 40): a(f"v_mov_b32 v{r}, 0")
    a("s_mov_b32 s47, 0")
    def gate():
        a("s_lshl_b32 s60, s43, 7")
        a("v_add_u32 v24, s60, v20"); a("v_add_u32 v25, s47, v22"); a("v_add_u32 v26, s47, v23")
        lq = LQ(a)
        for half in range(2):
            b = half * 12
            a(f"ds_read_b128 {vr(b,4,'a')}, v24 offset:{half*64}"); lq.issue(half)
            for p in range(2):
                a(f"ds_read_b128 {vr(b+4+4*p,4,'a')}, v{25+half} offset:{p*2048}"); lq.issue(half)
        for half in range(2):
            b = half * 12
            lq.wait(half)
            for p in range(2): mfma(a, 32 + 4 * p, b, b + 4 + 4 * p, 32 + 4 * p)
        adv_stage(a, 47, MST); adv_kd(a, 43)
    for s in range(5):
        a(f"v_add_u32 v2, {64*s}, v1")
        a("v_mul_u32_u24 v3, 6554, v2"); a("v_lshrrev_b32 v3, 16, v3")
        a("v_mul_u32_u24 v4, 10, v3"); a("v_sub_u32 v4, v2, v4")
        a("v_mul_u32_u24 v3, 1280, v3"); a(f"v_lshl_add_u32 v{40+s}, v4, 4, v3")
    a("s_mul_i32 s44, s59, 5120"); a(f"s_add_u32 s44, s44, {MSIDE}")
    a("v_lshrrev_b32 v2, 2, v1"); a("v_mul_u32_u24 v2, 160, v2"); a("v_add_u32 v2, s44, v2"); a("v_and_b32 v3, 3, v1")
    a("v_lshl_add_u32 v45, v3, 4, v2"); a("v_lshl_add_u32 v46, v3, 3, v2")
    a("s_lshl_b32 s62, s54, 3"); a("s_add_u32 s62, s62, s55")
    srd(a, 72, 22, WS_B, 8 * 68 * 5120)
    def side_issue():
        a("s_lshr_b32 s63, s62, 1"); a("s_and_b32 s64, s62, 1"); a("s_lshl_b32 s64, s64, 2"); a("s_add_u32 s64, s64, s59")
        a("s_cmp_lt_u32 s63, 20")
        a("s_cselect_b32 s68, s8, s16"); a("s_cselect_b32 s69, s9, s17"); a(f"s_mov_b32 s70, {1536*1280}"); a(f"s_cselect_b32 s70, {640*1280}, s70")
        a("s_cselect_b32 s65, 0, 20"); a("s_and_b32 s69, s69, 0xffff"); a("s_mov_b32 s71, 0x00020000")
        a("s_sub_u32 s65, s63, s65"); a("s_mul_i32 s65, s65, 40960"); a("s_mul_i32 s66, s64, 160"); a("s_add_u32 s65, s65, s66")
        for s in range(5):
            a(f"s_add_u32 m0, s44, {s*1024}"); a("s_nop 0")
            a(f"buffer_load_dwordx4 v{40+s}, s[68:71], s65 offen lds")
        a("s_mul_i32 s66, s64, 68"); a("s_add_u32 s66, s66, s63"); a("s_mul_i32 s66, s66, 5120"); a("s_add_u32 s67, s66, 4096")
    def side_finish():
        for t in range(5):
            for e in range(2):
                if t < 4: a(f"ds_read_b64_tr_b16 {vr(48+4*t+2*e,2)}, v45 offset:{e*2560+(t>>1)*64+(t&1)*8}")
                else: a(f"ds_read_b64_tr_b16 {vr(48+4*t+2*e,2)}, v46 offset:{e*2560+128}")
        a("s_waitcnt lgkmcnt(0)")
        for t in range(4): a(f"buffer_store_dwordx4 {vr(48+4*t)}, v9, s[72:75], s66 offen offset:{t*1024}{o.sc}")
        a(f"buffer_store_dwordx4 {vr(64)}, v9, s[72:75], s67 offen{o.sc}")
    a("s_mov_b32 s48, 8")
    a("ML_LOOP:")
    a("s_waitcnt vmcnt(10)"); a("s_barrier")
    issue(); gate()
    a("s_sub_u32 s48, s48, 1"); a("s_cmp_lg_u32 s48, 0"); a("s_cbranch_scc1 ML_LOOP")
    side_issue()
    a("s_waitcnt vmcnt(15)"); a("s_barrier"); gate()
    a("s_waitcnt vmcnt(5)"); a("s_barrier"); gate()
    lg = a.label("ML_NOG")
    a("s_cmp_lg_u32 s55, 0"); a(f"s_cbranch_scc1 {lg}")
    srd(a, 76, 22, WS_G, 8192)
    a("s_lshl_b32 s60, s59, 5"); a("s_add_u32 s60, s60, s58"); a("s_lshl_b32 s60, s60, 2")
    a("v_lshlrev_b32 v2, 3, v1")
    a("s_nop 4")
    a("v_mul_f32 v32, 0xbfb8aa3b, v32"); a("v_mul_f32 v33, 0xbfb8aa3b, v36")
    a("v_exp_f32 v32, v32"); a("v_exp_f32 v33, v33"); a("s_nop 0")
    a("v_add_f32 v32, 1.0, v32"); a("v_add_f32 v33, 1.0, v33")
    a("v_rcp_f32 v32, v32"); a("v_rcp_f32 v33, v33")
    a("s_mov_b64 exec, 0xffff"); a("s_nop 0")
    a(f"buffer_store_dwordx2 v[32:33], v2, s[76:79], s60 offen{o.sc}")
    a("s_mov_b64 exec, -1")
    a(f"{lg}:")
    a("s_waitcnt vmcnt(0)")
    side_finish()
    a("s_cmp_ge_u32 s62, 8"); a("s_cbranch_scc1 K1_EXIT")
    a("s_add_u32 s62, s62, 128")
    side_issue()
    a("s_waitcnt vmcnt(0)")
    side_finish()
    a("s_endpgm")

def k2(a, o):
    a.begin("gm2_kernel", 256, 256, 81920, vgpr=128, agpr=144)
    a("s_cmp_ge_u32 s2, 256"); a("s_cbranch_scc1 K2_EXIT")
    if o.stamps: a.stamp(0)
    a("s_load_dwordx2 s[4:5], s[0:1], 88")
    a("s_load_dwordx2 s[6:7], s[0:1], 56")
    a("s_load_dwordx2 s[8:9], s[0:1], 72")
    a("v_and_b32 v1, 63, v0"); a("v_lshrrev_b32 v2, 6, v0")
    a("s_and_b32 s50, s2, 7"); a("s_lshr_b32 s51, s2, 3")
    a("v_readfirstlane_b32 s3, v2")
    if o.k2map == 0:
        a("s_lshl_b32 s52, s50, 2"); a("s_lshr_b32 s53, s51, 3"); a("s_add_u32 s52, s52, s53"); a("s_and_b32 s53, s51, 7")
    else:
        a("s_lshr_b32 s52, s50, 1"); a("s_lshl_b32 s52, s52, 3"); a("s_lshr_b32 s53, s51, 2"); a("s_add_u32 s52, s52, s53")
        a("s_and_b32 s53, s50, 1"); a("s_lshl_b32 s53, s53, 2"); a("s_and_b32 s54, s51, 3"); a("s_add_u32 s53, s53, s54")
    a("s_lshl_b32 s54, s3, 4"); a("s_add_u32 s54, s54, 4"); a("s_cmp_eq_u32 s3, 0"); a("s_cselect_b32 s54, 0, s54")
    a("s_cselect_b32 s48, 4, 3")
    a("s_mul_i32 s36, s52, 68"); a("s_add_u32 s36, s36, s54"); a("s_lshl_b32 s36, s36, 12")
    a("s_mul_i32 s37, s53, 68"); a("s_add_u32 s37, s37, s54"); a("s_mul_i32 s37, s37, 5120")
    a("v_lshlrev_b32 v2, 4, v1"); a("v_add_u32 v3, 4096, v2")
    a("s_waitcnt lgkmcnt(0)")
    srd(a, 24, 4, WS_A, 32 * 68 * 4096); srd(a, 28, 4, WS_B, 8 * 68 * 5120)
    BUF = lambda n: (n % 4) * 36
    def loads(n):
        b = BUF(n)
        L = []
        for t in range(5):
            L.append(f"buffer_load_dwordx4 {vr(b+16+4*t,4,'a')}, v{2 if t<4 else 3}, s[28:31], s37 offen offset:{(t%4)*1024}")
        for i in range(4):
            L.append(f"buffer_load_dwordx4 {vr(b+4*i,4,'a')}, v2, s[24:27], s36 offen offset:{i*1024}")
        order = [L[5], L[0], L[6], L[1], L[7], L[2], L[8], L[3], L[4]]
        return order
    def adv(): a("s_add_u32 s36, s36, 4096"); a("s_add_u32 s37, s37, 5120")
    for n in range(3):
        for s in loads(n): a(s)
        adv()
    srd(a, 32, 6, 0, 1280); srd(a, 40, 4, WS_G, 8192); srd(a, 44, 8, 0, 2048 * 1280)
    ACC = lambda i, t: 8 + (i * 5 + t) * 4
    for r in range(8, 88): a(f"v_mov_b32 v{r}, 0")
    def step(n, ld, wait):
        a(f"s_waitcnt vmcnt({wait})")
        b = BUF(n)
        L = loads(n + 3) if ld else []
        k = 0
        for t in range(5):
            for i in range(4):
                mfma(a, ACC(i, t), b + 16 + 4 * t, b + 4 * i, ACC(i, t))
                if k % 2 == 1 and L: a(L.pop(0))
                k += 1
        for s in L: a(s)
        if ld: adv()
    a("K2_LOOP:")
    for n in range(4): step(n, True, 18)
    a("s_sub_u32 s48, s48, 1"); a("s_cmp_lg_u32 s48, 0"); a("s_cbranch_scc1 K2_LOOP")
    step(0, True, 18)
    a("v_and_b32 v4, 15, v1"); a("v_lshrrev_b32 v5, 4, v1")
    a("s_lshl_b32 s55, s52, 6"); a("s_lshr_b32 s56, s3, 1"); a("s_lshl_b32 s56, s56, 5"); a("s_add_u32 s55, s55, s56")
    a("s_and_b32 s56, s3, 1"); a("s_add_u32 s55, s55, s56")
    a("v_lshlrev_b32 v6, 3, v4"); a("s_lshl_b32 s56, s55, 2")
    a("buffer_load_dword v88, v6, s[40:43], s56 offen")
    a("v_lshlrev_b32 v6, 4, v5"); a("v_lshlrev_b32 v7, 3, v5"); a("s_mul_i32 s57, s53, 160")
    a("buffer_load_dwordx4 v[92:95], v6, s[32:35], s57 offen")
    a("buffer_load_dwordx4 v[96:99], v6, s[32:35], s57 offen offset:64")
    a("buffer_load_dwordx2 v[100:101], v7, s[32:35], s57 offen offset:128")
    step(1, False, 22); step(2, False, 13); step(3, False, 4)
    if o.stamps: a.stamp(1)
    a("v_mul_u32_u24 v4, 2560, v4"); a("v_add_u32 v6, v4, v6"); a("v_add_u32 v7, v4, v7")
    a("s_mul_i32 s56, s55, 1280"); a("s_add_u32 s56, s56, s57")
    a("s_mul_i32 s58, s3, 20480"); a("v_add_u32 v4, s58, v2")
    a("s_mul_i32 s58, s3, 5120"); a("v_add_u32 v5, s58, v2")
    a("s_nop 4")
    for i in range(4):
        for t in range(5): a(f"ds_write_b128 v4, {vr(ACC(i,t))} offset:{(i*5+t)*1024}")
    a("s_waitcnt lgkmcnt(0)"); a("s_barrier")
    P = lambda w, t: 8 + (w * 5 + t) * 4
    for w in range(3):
        for t in range(5): a(f"ds_read_b128 {vr(P(w,t))}, v5 offset:{w*20480+t*1024}")
    a("v_add_u32 v5, 61440, v5")
    a("s_waitcnt vmcnt(0)")
    for k in range(10):
        s = 92 + k
        a(f"v_lshlrev_b32 v{104+2*k}, 16, v{s}"); a(f"v_and_b32 v{105+2*k}, 0xffff0000, v{s}")
    a("s_waitcnt lgkmcnt(5)")
    for t in range(5): a(f"ds_read_b128 {vr(P(3,t))}, v5 offset:{t*1024}")
    a("v_sub_f32 v89, 1.0, v88")
    B2 = lambda t, r: 104 + (t * 4 + r)
    for t in range(5):
        for r in range(4): a(f"v_add_f32 v{B2(t,r)}, v{B2(t,r)}, v{P(1,t)+r}")
    a("s_waitcnt lgkmcnt(5)")
    for t in range(5):
        for r in range(4): a(f"v_add_f32 v{B2(t,r)}, v{B2(t,r)}, v{P(2,t)+r}")
    for t in range(5):
        for r in range(4): a(f"v_mul_f32 v{P(0,t)+r}, v88, v{P(0,t)+r}")
    a("s_waitcnt lgkmcnt(0)")
    for t in range(5):
        for r in range(4): a(f"v_add_f32 v{B2(t,r)}, v{B2(t,r)}, v{P(3,t)+r}")
    for t in range(5):
        for r in range(4): a(f"v_fma_f32 v{B2(t,r)}, v89, v{B2(t,r)}, v{P(0,t)+r}")
    for k in range(10): a(f"v_cvt_pk_bf16_f32 v{8+k}, v{104+2*k}, v{105+2*k}")
    a(f"buffer_store_dwordx4 v[8:11], v6, s[44:47], s56 offen{o.osc}")
    a(f"buffer_store_dwordx4 v[12:15], v6, s[44:47], s56 offen offset:64{o.osc}")
    a(f"buffer_store_dwordx2 v[16:17], v7, s[44:47], s56 offen offset:128{o.osc}")
    if o.stamps:
        a.stamp(2); a("s_waitcnt vmcnt(0)"); a.stamp(3)
        a.dump_stamps(4, 1, 4, vtid="v0", tmp=("v20", "v21", "v22", "v23"))
    a("K2_EXIT:"); a("s_endpgm")

def gen(o):
    a = Asm()
    k1(a, o); k2(a, o)
    return a.text()

if __name__ == "__main__":
    o = Opt()
    out = "gated_mix__sliding_local_dilated__dense_activation_gelu__prompt.s"
    for arg in sys.argv[1:]:
        if arg.startswith("out="): out = arg[4:]
        else:
            k, v = arg.split("=")
            cur = getattr(o, k)
            setattr(o, k, (" " + v if v else "") if isinstance(cur, str) else type(cur)(int(v)))
    open(out, "w").write(gen(o))
```

```python
import sys, math, re
from asmlib import *

WS_A = 0
WS_B = 16 << 20
WS_G = 24 << 20
NEGINF = "0xff800000"
SC = " sc1"

class Opt:
    stamps = False
    k2map = 1
    rot = True
    sc = " sc1"
    osc = ""
    trace = 0
    l2f = ""
    l1f = ""
    nocomp = False
    noload = False
    nohalo = 0
    halfread = False
    k2v = 1
    nb = 6
    rot2 = 0
    pf2 = 0
    pfw = 0
    k2rep = 0
    gv = 0
    pf1 = 0
    pfs = 2
    k2dma = 0
    k2nomf = 0
    k2dup = 0
    pipe = 1
    pd = 0
    pl = 3
    pr = 0
    cw = 0
    hv = 0
    slp = 3
    prio = 3
    ml = 2

class LQ:
    def __init__(self, a):
        self.a = a; self.q = []
    def issue(self, tag):
        self.q.append(tag)
        assert len(self.q) <= 15, "too many outstanding lds ops"
    def wait(self, tag):
        if tag not in self.q: return
        last = max(i for i, t in enumerate(self.q) if t == tag)
        n = len(self.q) - 1 - last
        self.a(f"s_waitcnt lgkmcnt({n})")
        self.q = self.q[last + 1:]
    def waitall(self):
        self.a("s_waitcnt lgkmcnt(0)"); self.q = []

def srd(a, dst, lo, add=0, size=0x7fffffff):
    if add:
        a(f"s_add_u32 s{dst}, s{lo}, {add}"); a(f"s_addc_u32 s{dst+1}, s{lo+1}, 0")
        a(f"s_and_b32 s{dst+1}, s{dst+1}, 0xffff")
    else:
        a(f"s_mov_b32 s{dst}, s{lo}"); a(f"s_and_b32 s{dst+1}, s{lo+1}, 0xffff")
    a(f"s_mov_b32 s{dst+2}, {size}"); a(f"s_mov_b32 s{dst+3}, 0x00020000")

def vr(b, n=4, t="v"):
    return f"{t}[{b}:{b+n-1}]"

def mfma(a, d, x, y, c, dt="v", xt="a", yt="a"):
    cs = c if isinstance(c, str) else vr(c, 4, dt)
    a(f"v_mfma_f32_16x16x32_bf16 {vr(d,4,dt)}, {vr(x,4,xt)}, {vr(y,4,yt)}, {cs}")

QST = 49152
QX = 32768
QH = 30720
MST = 40960
MX = 24576
MGATE = 3 * MST
MSIDE = MGATE + 2048
EXB = QST
K1LDS = 3 * QST

def x_voffs(a, dst, tmp):
    t0, t1, t2 = tmp, tmp + 1, tmp + 2
    a(f"v_lshrrev_b32 v{t0}, 3, v1")
    a(f"v_lshrrev_b32 v{t1}, 4, v1")
    a(f"v_and_b32 v{t2}, 7, v1")
    a("s_lshl_b32 s60, s59, 5"); a("s_add_u32 s60, s60, s58")
    a("s_mul_i32 s60, s60, 1280")
    a(f"v_mul_u32_u24 v{t0}, 2560, v{t0}")
    a(f"v_add_u32 v{t0}, s60, v{t0}")
    for s in range(4):
        if s & 1:
            a(f"v_or_b32 v{dst+s}, 4, v{t1}")
            a(f"v_xor_b32 v{dst+s}, v{dst+s}, v{t2}")
        else:
            a(f"v_xor_b32 v{dst+s}, v{t1}, v{t2}")
        a(f"v_lshl_add_u32 v{dst+s}, v{dst+s}, 4, v{t0}")
        add = (16 * (s & 1) + (s >> 1)) * 1280
        if add: a(f"v_add_u32 v{dst+s}, {add}, v{dst+s}")

def x_read_addr(a, d0, d1, region, tmp, wave=True):
    t0, t1 = tmp, tmp + 1
    a(f"v_and_b32 v{t0}, 15, v1")
    a(f"v_lshrrev_b32 v{t1}, 1, v{t0}")
    a(f"v_lshrrev_b32 v{d0}, 4, v1")
    a(f"v_xor_b32 v{d0}, v{d0}, v{t1}")
    a(f"v_lshlrev_b32 v{d0}, 4, v{d0}")
    a(f"v_lshl_add_u32 v{d0}, v{t0}, 7, v{d0}")
    if wave:
        a("s_lshl_b32 s60, s59, 12"); a(f"s_add_u32 s60, s60, {region}")
        a(f"v_add_u32 v{d0}, s60, v{d0}")
    else:
        a(f"v_add_u32 v{d0}, {region}, v{d0}")
    a(f"v_xor_b32 v{d1}, 64, v{d0}")

def slot0(a, d, tmp):
    a(f"v_lshrrev_b32 v{d}, 5, v1"); a(f"v_lshlrev_b32 v{d}, 4, v{d}")
    a(f"v_bfe_u32 v{tmp}, v1, 2, 3")
    a(f"v_add_u32 v{d}, v{d}, v{tmp}")

def adv_stage(a, sreg, st):
    a(f"s_add_u32 s{sreg}, s{sreg}, {st}"); a(f"s_cmp_eq_u32 s{sreg}, {3*st}"); a(f"s_cselect_b32 s{sreg}, 0, s{sreg}")

def adv_kd(a, sreg):
    a(f"s_add_u32 s{sreg}, s{sreg}, 1"); a(f"s_cmp_eq_u32 s{sreg}, 10"); a(f"s_cselect_b32 s{sreg}, 0, s{sreg}")

TR_OFF = 210 << 20
def trace(a, o, vreg, idx):
    if not o.trace: return
    if o.trace == 2 and isinstance(idx, str): return
    a("s_memrealtime s[98:99]")
    if isinstance(idx, str): a(f"s_mov_b32 m0, {idx}"); idx = "m0"
    a("s_waitcnt lgkmcnt(0)"); a(f"v_writelane_b32 v{vreg}, s98, {idx}")
def trace_clk(a, o, vreg, idx):
    if not o.trace: return
    a("s_memtime s[98:99]"); a("s_waitcnt lgkmcnt(0)"); a(f"v_writelane_b32 v{vreg}, s98, {idx}")
    a("s_memrealtime s[98:99]"); a("s_waitcnt lgkmcnt(0)"); a(f"v_writelane_b32 v{vreg}, s98, {idx+1}")
def trace_dump(a, o, vreg, wsp, launch, tmp):
    if not o.trace: return
    a("s_lshl_b32 s84, s2, 3"); a("s_add_u32 s84, s84, s3"); a("s_lshl_b32 s84, s84, 8")
    a(f"s_add_u32 s86, s{wsp}, {TR_OFF + launch*(1<<20)}"); a(f"s_addc_u32 s87, s{wsp+1}, 0")
    a("s_add_u32 s86, s86, s84"); a("s_addc_u32 s87, s87, 0")
    a(f"v_lshlrev_b32 v{tmp}, 2, v1")
    a(f"global_store_dword v{tmp}, v{vreg}, s[86:87]")

def k1(a, o):
    a.begin("gm1_kernel", 256, 512, K1LDS, vgpr=208, agpr=48)
    L_exit = "K1_EXIT"
    a("s_cmp_ge_u32 s2, 256"); a(f"s_cbranch_scc1 {L_exit}")
    if o.stamps: a.stamp(0)
    a("s_load_dwordx4 s[4:7], s[0:1], 0")
    a("s_load_dwordx2 s[8:9], s[0:1], 16")
    a("s_load_dwordx8 s[12:19], s[0:1], 32")
    a("s_load_dwordx2 s[20:21], s[0:1], 64")
    a("s_load_dwordx2 s[22:23], s[0:1], 88")
    a("v_and_b32 v1, 63, v0"); a("v_lshrrev_b32 v2, 6, v0")
    a("s_and_b32 s50, s2, 7"); a("s_lshr_b32 s51, s2, 3")
    a("v_readfirstlane_b32 s3, v2")
    a("s_and_b32 s52, s51, 7"); a("s_lshr_b32 s53, s51, 3")
    a("s_and_b32 s54, s50, 1"); a("s_lshl_b32 s54, s54, 3"); a("s_add_u32 s54, s54, s52")
    a("s_and_b32 s55, s50, 6"); a("s_and_b32 s56, s53, 1"); a("s_add_u32 s55, s55, s56")
    if o.rot:
        a("s_mul_i32 s56, s52, 5"); a("s_mul_i32 s57, s53, 10"); a("s_add_u32 s56, s56, s57"); a("s_lshr_b32 s42, s56, 2")
        a("s_sub_u32 s56, s42, 10"); a("s_cmp_ge_u32 s42, 10"); a("s_cselect_b32 s42, s56, s42")
    else:
        a("s_mov_b32 s42, 0")
    if o.trace: a("v_mov_b32 v0, 0")
    trace(a, o, 0, 0)
    a("s_lshl_b32 s58, s54, 7")
    a("s_and_b32 s59, s3, 3")
    a("s_cmp_ge_u32 s53, 2"); a("s_cbranch_scc1 K1_MLP")
    a("s_cmp_ge_u32 s3, 4"); a("s_cbranch_scc1 K1_QL")
    qkv_consumer(a, o)
    a("K1_QL:")
    qkv_loader(a, o)
    a("K1_MLP:")
    a("s_cmp_ge_u32 s3, 4"); a("s_cbranch_scc1 K1_ML")
    (mlp_consumer2 if o.pipe else mlp_consumer)(a, o)
    a("K1_ML:")
    mlp_loader(a, o)
    a(f"{L_exit}:"); a("s_endpgm")

HALFREAD = False
GV = 0
def gemm_stage(a, ntile, wread, xaddr, acc, wfirst, D=6, XB=24):
    lq = LQ(a)
    NP = 2; ft = "a"; FB = 0
    if GV == 5:
        NP = 4; ntile = (ntile + 1) // 2; D = 4; XB = 16
        acc0 = acc; acc = lambda p, T: acc0(0, 0) + (p * ntile + T) * 4
    if GV == 4: ft = "v"; FB = 160 if ntile == 15 else 128; D = 6; XB = 24
    if GV == 3: D = 7; XB = 28
    def rdx(half, p):
        a(f"ds_read_b128 {vr(FB+XB+(half*NP+p)*4,4,ft)}, v{xaddr[half]} offset:{p*2048}"); lq.issue(("x", half, p))
    def rdw(f):
        half, T = divmod(f, ntile)
        if HALFREAD and (f & 1): return
        for h in range(2):
            va, imm = wread(half, h, T)
            a(f"ds_read_b64_tr_b16 {vr(FB+(f%D)*4+2*h,2,ft)}, v{va} offset:{imm}"); lq.issue(("w", f))
    nf = 2 * ntile
    rdx(0, 0); rdw(0)
    for p in range(1, NP): rdx(0, p)
    for f in range(1, D): rdw(f)
    for f in range(nf):
        half, T = divmod(f, ntile)
        if GV == 2:
            if f % 2 == 0: lq.wait(("w", min(f + 1, nf - 1)))
        else: lq.wait(("w", f))
        if T == 0: lq.wait(("x", half, 0))
        for p in range(NP):
            if T == 0 and p >= 1: lq.wait(("x", half, p))
            W = FB + (f % D) * 4; X = FB + XB + (half * NP + p) * 4
            if wfirst(T): mfma(a, acc(p, T), W, X, acc(p, T), xt=ft, yt=ft)
            else: mfma(a, acc(p, T), X, W, acc(p, T), xt=ft, yt=ft)
        if f + D < nf:
            rdw(f + D)
        if NP == 2:
            if f == ntile - D - 1: rdx(1, 0)
            if f == ntile - D: rdx(1, 1)
        else:
            if 0 <= f - (ntile - D - 2) < 4: rdx(1, f - (ntile - D - 2))


def gemm_loop(a, o, name, ntile, NP, wread, xaddr, acc, wfirst, advance, D, lead, rate=1, hrate=2, xoff=0, extra=None):
    from collections import deque
    lq = LQ(a)
    XB = 4 * D
    fifo = deque()
    def rdx(half, p):
        def fn():
            if p == NP: a(f"ds_read_b128 {vr(XB+(2*NP+half)*4,4,'a')}, v{xaddr[half]}")
            else: a(f"ds_read_b128 {vr(XB+(half*NP+p)*4,4,'a')}, v{xaddr[half]} offset:{xoff+p*2048}")
            lq.issue(("x", half, p))
        fifo.append(fn)
    def rdw(f):
        half, T = divmod(f, ntile)
        for h in range(2):
            def fn(h=h):
                va, imm = wread(half, h, T)
                a(f"ds_read_b64_tr_b16 {vr((f%D)*4+2*h,2,'a')}, v{va} offset:{imm}"); lq.issue(("w", f))
            fifo.append(fn)
    def drain(n):
        while fifo and n > 0:
            fifo.popleft()(); n -= 1
    nf = 2 * ntile
    assert nf % D == 0
    fs = nf - lead; c = D - lead
    def head():
        rdx(0, 0); rdw(0)
        for p in range(1, NP): rdx(0, p)
        for f in range(1, c): rdw(f)
        if extra: rdx(0, NP)
    a("s_mov_b32 s48, 10")
    trace(a, o, 0, 10)
    a("s_barrier")
    trace(a, o, 0, 26)
    trace_clk(a, o, 0, 40)
    head()
    for f in range(c, D): rdw(f)
    drain(99)
    a(f"{name}_LOOP:")
    for f in range(nf):
        half, T = divmod(f, ntile)
        if f == fs:
            drain(99)
            lq.waitall()
            if o.trace == 1: trace(a, o, 0, "s48")
            a("s_barrier")
            if o.trace == 1: a("s_add_u32 s97, s48, 16"); trace(a, o, 0, "s97")
            head()
        if f < fs:
            lq.wait(("w", f))
            if T == 0: lq.wait(("x", half, 0))
        for p in range(NP):
            if T == 0 and p >= 1 and f < fs: lq.wait(("x", half, p))
            W = (f % D) * 4; X = XB + (half * NP + p) * 4
            if wfirst(T): mfma(a, acc(p, T), W, X, acc(p, T))
            else: mfma(a, acc(p, T), X, W, acc(p, T))
            if p == NP - 1 and extra and T in extra:
                drain(1)
                if f < fs: lq.wait(("x", half, NP))
                X = XB + (2 * NP + half) * 4
                if wfirst(T): mfma(a, extra[T], W, X, extra[T])
                else: mfma(a, extra[T], X, W, extra[T])
            if p == NP - 1:
                if f + D < nf: rdw(f + D)
                elif f >= fs: rdw(c + f - fs)
                k = f - max(0, ntile - D - NP + 1)
                if 0 <= k < NP + (1 if extra else 0): rdx(1, k)
                if f + D == nf - 1:
                    for ins in advance() + ["s_sub_u32 s48, s48, 1"]: fifo.append(lambda ins=ins: a(ins))
                if f == nf - 1: a("s_cmp_lg_u32 s48, 0")
            drain(99 if (f == nf - 1 and p == NP - 1) else (hrate if (f >= fs or f + D >= nf - 1 or len(fifo) > 2) else rate))
    a(f"s_cbranch_scc1 {name}_LOOP")
    trace_clk(a, o, 0, 42)

def adv_list(sreg, st):
    return [f"s_add_u32 s{sreg}, s{sreg}, {st}", f"s_cmp_eq_u32 s{sreg}, {3*st}", f"s_cselect_b32 s{sreg}, 0, s{sreg}"]

def k1_prefetch(a, o, tag, wait=False):
    if not o.pf1:
        if wait: a("s_waitcnt vmcnt(0)")
        return
    S0 = o.pfs
    l1 = f"PF1_{tag}"; l2 = f"PF2_{tag}"; ld = f"PFD_{tag}"
    a("s_waitcnt lgkmcnt(0)")
    a("s_cmp_eq_u32 s3, 1"); a(f"s_cbranch_scc1 {l1}")
    a("s_cmp_eq_u32 s3, 2"); a(f"s_cbranch_scc1 {l2}")
    if wait:
        a("s_cmp_lg_u32 s3, 3"); a(f"s_cbranch_scc1 PF0_{tag}"); a("s_waitcnt vmcnt(0)"); a(f"s_branch {ld}"); a(f"PF0_{tag}:")
    else:
        a("s_cmp_eq_u32 s3, 3"); a(f"s_cbranch_scc1 {ld}")
    srd(a, 80, 4, 0, 2048 * 1280)
    a("s_and_b32 s60, s50, 1"); a("s_lshl_b32 s60, s60, 10"); a("s_lshl_b32 s61, s51, 5"); a("s_add_u32 s60, s60, s61"); a("s_mul_i32 s60, s60, 1280")
    a("v_lshrrev_b32 v2, 1, v1"); a("v_mul_u32_u24 v2, 1280, v2"); a("v_and_b32 v3, 1, v1"); a("v_lshl_add_u32 v2, v3, 6, v2")
    for kd in range(S0, 10): a(f"buffer_load_dword v3, v2, s[80:83], s60 offen offset:{kd*128}")
    if wait: a(f"s_waitcnt vmcnt({10-S0})")
    a(f"s_branch {ld}")
    for lab, ptr, rowb, nsec, segn, segb, pairb in ((l1, 6, 3840, 15, 5, 1280, 320), (l2, 12, 3072, 12, 12, 0, 768)):
        a(f"{lab}:")
        srd(a, 80, ptr, 0, 640 * rowb)
        a("v_and_b32 v2, 31, v1"); a(f"v_min_u32 v2, {2*nsec-1}, v2")
        a(f"v_cmp_le_u32 vcc, {nsec}, v2"); a("v_cndmask_b32 v3, 0, 1, vcc"); a(f"v_mul_u32_u24 v4, {nsec}, v3"); a("v_sub_u32 v2, v2, v4")
        a("v_lshrrev_b32 v4, 5, v1"); a("v_lshl_add_u32 v3, v4, 6, v3"); a(f"v_mul_u32_u24 v3, {rowb}, v3")
        if segb:
            a("v_mul_u32_u24 v4, 52, v2"); a("v_lshrrev_b32 v4, 8, v4")
            a(f"v_mul_u32_u24 v4, {segb - segn*64}, v4"); a("v_add_u32 v3, v3, v4")
        a("v_lshl_add_u32 v2, v2, 6, v3")
        a(f"s_lshr_b32 s60, s50, 1"); a(f"s_mul_i32 s60, s60, {pairb}"); a(f"s_mul_i32 s61, s51, {2*rowb}"); a("s_add_u32 s60, s60, s61")
        a(f"s_add_u32 s60, s60, {S0*64*rowb}")
        for kd in range(S0, 10, 2):
            a(f"buffer_load_dword v3, v2, s[80:83], s60 offen"); a(f"s_add_u32 s60, s60, {128*rowb}")
        if wait: a(f"s_waitcnt vmcnt({(10-S0)//2})")
        if lab == l1: a(f"s_branch {ld}")
    a(f"{ld}:")

def code_warm(a, o):
    if not o.cw: return
    n = o.cw
    a("s_getpc_b64 s[80:81]")
    a("CWL_%d:" % a.uid); lab = "CWL_%d" % a.uid; a.uid += 1
    a(f"s_sub_u32 s80, s80, {lab}-gm1_kernel"); a("s_subb_u32 s81, s81, 0")
    a("s_lshl_b32 s82, s51, 2"); a("s_add_u32 s82, s82, s59"); a(f"s_mul_i32 s82, s82, {64*n}")
    a("s_min_u32 s82, s82, CODE_END-gm1_kernel-%d" % (64 * n))
    a("s_add_u32 s80, s80, s82"); a("s_addc_u32 s81, s81, 0")
    for k in range(n): a(f"s_load_dword s{82+k}, s[80:81], {64*k}")

def qkv_consumer(a, o):
    code_warm(a, o)
    k1_prefetch(a, o, "Q")
    ACC = lambda p, T: 8 + (p * 15 + T) * 4
    QM = lambda p, h: 128 + p * 16 + h * 4
    KP = [160, 48]; VP = lambda p, T: (28 if p == 0 else 88) + 4 * T
    KQ = [108, 118]
    BO = 170; BP = [174, 178]; MO = 182; ONES = 184
    OWN = [[8, 12, 16, 20], [24, 84, 58, 62]]
    PRV = [[68, 72, 76, 80], [188, 192, 196, 200]]
    slot0(a, 2, 5)
    a("v_mul_u32_u24 v2, 480, v2"); a("v_and_b32 v5, 3, v1"); a("v_lshl_add_u32 v2, v5, 3, v2")
    if o.pipe: x_read_addr(a, 3, 4, QH, 5, wave=False)
    else: x_read_addr(a, 3, 4, QX, 5)
    for r in range(8, 160): a(f"v_mov_b32 v{r}, 0")
    for r in range(4): a(f"v_mov_b32 v{ONES+r}, 0x3f803f80")
    a("v_and_b32 v5, 15, v1"); a("v_lshrrev_b32 v6, 4, v1"); a("v_lshlrev_b32 v6, 2, v6")
    a("s_mov_b32 s60, 9"); a("s_mov_b32 s61, 15"); a("s_mov_b32 s62, 9")
    a("s_cmp_eq_u32 s59, 0"); a("s_cselect_b32 s60, 1, s60"); a("s_cselect_b32 s61, 7, s61")
    a("s_or_b32 s63, s59, s58"); a("s_cmp_eq_u32 s63, 0"); a("s_cselect_b32 s60, 99, s60"); a("s_cselect_b32 s62, 99, s62")
    a(f"v_mov_b32 v{MO}, 0"); a(f"v_mov_b32 v{MO+1}, 0"); a(f"v_mov_b32 v204, {NEGINF}")
    for r in range(4):
        a(f"v_add_u32 v7, {r}, v6")
        a("v_sub_u32 v205, v5, v7")
        a("v_cmp_ge_u32 vcc, 7, v205")
        a("v_sub_u32 v206, v7, v5")
        a(f"v_mov_b32 v207, {'0xffff' if r % 2 == 0 else '0xffff0000'}")
        a(f"v_cndmask_b32 v{BO+r}, v204, 0, vcc")
        a(f"v_cndmask_b32 v207, 0, v207, vcc")
        a(f"v_or_b32 v{MO+r//2}, v{MO+r//2}, v207")
        a("v_cmp_le_i32 vcc, s60, v206"); a("v_cmp_ge_i32 s[64:65], s61, v7"); a("s_nop 0"); a("s_and_b64 vcc, vcc, s[64:65]")
        a("s_nop 1")
        a(f"v_cndmask_b32 v{BP[0]+r}, v204, 0, vcc")
        a("v_cmp_le_i32 vcc, s62, v206"); a("s_nop 1")
        a(f"v_cndmask_b32 v{BP[1]+r}, v204, 0, vcc")
    a("s_mov_b32 s66, 0xffff0000"); a("s_mov_b32 s67, -1"); a("s_mov_b32 s68, 0"); a("s_mov_b32 s69, -1")
    a("s_mov_b32 s70, 0"); a("s_mov_b32 s71, 0xffff0000")
    for T in range(3): a(f"s_not_b64 s[{72+2*T}:{73+2*T}], s[{66+2*T}:{67+2*T}]")
    HI = lambda T: "-1" if T == 0 else f"s[{64+2*T}:{65+2*T}]"
    LO = lambda T: "-1" if T == 4 else f"s[{70+2*T}:{71+2*T}]"
    a("s_waitcnt lgkmcnt(0)")
    srd(a, 24, 22, WS_A, 32 * 68 * 4096)
    a("s_lshl_b32 s36, s54, 1"); a("s_lshr_b32 s37, s59, 1"); a("s_add_u32 s36, s36, s37"); a("s_mul_i32 s36, s36, 68")
    a("s_mul_i32 s37, s55, 5"); a("s_lshr_b32 s37, s37, 1"); a("s_add_u32 s36, s36, s37"); a("s_lshl_b32 s36, s36, 12")
    a("s_and_b32 s37, s59, 1"); a("s_lshl_b32 s37, s37, 11"); a("s_add_u32 s36, s36, s37")
    a("s_add_u32 s37, s36, 4096"); a("s_add_u32 s38, s36, 8192")
    a("s_mov_b32 s47, 0"); a("s_mov_b32 s48, 10")
    a("v_mov_b32 v5, v2"); a("v_mov_b32 v6, v3"); a("v_mov_b32 v7, v4")
    if o.pipe:
        advq = lambda: adv_list(47, QST) + ["v_add_u32 v5, s47, v2", "v_add_u32 v6, s47, v3", "v_add_u32 v7, s47, v4"]
        for r in range(188, 200): a(f"v_mov_b32 v{r}, 0")
        for w in range(1, 4): a(f"s_cmp_eq_u32 s59, {w}"); a(f"s_cbranch_scc1 QC{w}_ENT")
        for w in range(4):
            a(f"QC{w}_ENT:")
            ex = {5 + w: 188, 10 + w: 192}
            if w == 0: ex[9] = 196
            if w == 1: ex[14] = 196
            gemm_loop(a, o, f"QC{w}", 15, 2, lambda half, h, T: (5, half * 15360 + h * 3840 + T * 32), [6, 7], ACC, lambda T: T < 10, advq, o.pd or 6, o.pl or 4, o.pr or 1,
                      xoff=2048 + 4096 * w, extra=ex)
            a(f"v_lshlrev_b32 v5, 3, v1"); a(f"v_add_u32 v5, {EXB}, v5"); a("s_nop 7")
            for b in (188, 192, 196)[:len(ex)]:
                a(f"v_cvt_pk_bf16_f32 v{b}, v{b}, v{b+1}"); a(f"v_cvt_pk_bf16_f32 v{b+1}, v{b+2}, v{b+3}")
            for p in range(2):
                a(f"ds_write_b64 v5, v[188:189] offset:{p*5120+w*512}")
                a(f"ds_write_b64 v5, v[192:193] offset:{p*5120+2560+w*512}")
                if w == 0: a(f"ds_write_b64 v5, v[196:197] offset:{p*5120+2048}")
                if w == 1: a(f"ds_write_b64 v5, v[196:197] offset:{p*5120+2560+2048}")
            if w < 3: a("s_branch QC_EPI")
        a("QC_EPI:")
    else:
        a("QC_LOOP:")
        trace(a, o, 0, "s48")
        a("s_barrier")
        if o.trace: a("s_add_u32 s97, s48, 16")
        trace(a, o, 0, "s97")
        if not o.nocomp: gemm_stage(a, 15, lambda half, h, T: (5, half * 15360 + h * 3840 + T * 32), [6, 7], ACC, lambda T: T < 10)
        adv_stage(a, 47, QST)
        a("v_add_u32 v5, s47, v2"); a("v_add_u32 v6, s47, v3"); a("v_add_u32 v7, s47, v4")
        a("s_sub_u32 s48, s48, 1"); a("s_cmp_lg_u32 s48, 0"); a("s_cbranch_scc1 QC_LOOP")
    if o.stamps: a.stamp(1)
    trace(a, o, 0, 32)
    def pack(dst, src):
        a(f"v_cvt_pk_bf16_f32 v{dst}, v{src}, v{src+1}"); a(f"v_cvt_pk_bf16_f32 v{dst+1}, v{src+2}, v{src+3}")
    a("s_mul_i32 s60, s59, 10240"); a(f"s_add_u32 s60, s60, {EXB}")
    a("v_lshl_add_u32 v6, v1, 3, s60"); a("v_add_u32 v5, 10240, v6")
    a("v_lshlrev_b32 v7, 4, v1")
    a("s_nop 4")
    lq = LQ(a)
    skipw = a.label("QC_NOW")
    for p in range(2):
        for T in range(5): pack(KP[p] + 2 * T, ACC(p, 5 + T))
        for T in range(5): pack(VP(p, T), ACC(p, 10 + T))
    a("s_cmp_eq_u32 s59, 3"); a(f"s_cbranch_scc1 {skipw}")
    for p in range(2):
        for T in range(5): a(f"ds_write_b64 v5, {vr(KP[p]+2*T,2)} offset:{p*5120+T*512}")
        for T in range(5): a(f"ds_write_b64 v5, {vr(VP(p,T),2)} offset:{p*5120+2560+T*512}")
    a(f"{skipw}:")
    for T in range(5):
        if T <= 3:
            a(f"s_mov_b64 exec, {HI(T)}")
            for p in range(2): pack(QM(p, T), ACC(p, T))
        if T >= 1:
            a(f"s_mov_b64 exec, {LO(T)}")
            for p in range(2): pack(QM(p, T - 1) + 2, ACC(p, T))
    a("s_mov_b64 exec, -1")
    a("s_nop 1")
    for p in range(2):
        for h in range(4): mfma(a, OWN[p][h], KP[p] + 2 * h, QM(p, h), BO, xt="v", yt="v")
    a("s_waitcnt lgkmcnt(0)")
    trace(a, o, 0, 33)
    a("s_barrier")
    trace(a, o, 0, 34)
    for p in range(2):
        for T in range(5): a(f"ds_read_b64 {vr(KQ[p]+2*T,2)}, v6 offset:{p*5120+T*512}"); lq.issue(("k", p))
    for p in range(2):
        for T in range(5):
            if p == 1 and T == 0: lq.wait(("k", 0))
            a(f"ds_read_b64 {vr(VP(p,T)+2,2)}, v6 offset:{p*5120+2560+T*512}"); lq.issue(("v", p))
    for p in range(2):
        lq.wait(("k", p))
        for h in range(4): mfma(a, PRV[p][h], KQ[p] + 2 * h, QM(p, h), BP[p], xt="v", yt="v")
    a("s_nop 7")
    MXA = [160 + i for i in range(8)]
    MXB = [48 + i for i in range(8)]
    for p in range(2):
        for h in range(4):
            for r in range(4): a(f"v_max_f32 v{OWN[p][h]+r}, v{OWN[p][h]+r}, v{PRV[p][h]+r}")
    for p in range(2):
        for h in range(4):
            b = OWN[p][h]
            a(f"v_max3_f32 v{MXA[p*4+h]}, v{b}, v{b+1}, v{b+2}")
    for p in range(2):
        for h in range(4):
            a(f"v_max_f32 v{MXA[p*4+h]}, v{MXA[p*4+h]}, v{OWN[p][h]+3}")
    a("s_nop 1")
    A_ = MXA
    for k in range(4): a(f"v_permlane32_swap_b32 v{A_[2*k]}, v{A_[2*k+1]}")
    a("s_nop 0")
    for k in range(4): a(f"v_max_f32 v{A_[2*k]}, v{A_[2*k]}, v{A_[2*k+1]}")
    a("s_nop 1")
    for k in range(2): a(f"v_permlane16_swap_b32 v{A_[4*k]}, v{A_[4*k+2]}")
    a("s_nop 1")
    for k in range(2): a(f"v_max_f32 v{A_[4*k]}, v{A_[4*k]}, v{A_[4*k+2]}")
    a(f"s_mov_b32 s60, {hex(f32bits(20 ** -0.5 * math.log2(math.e)))}")
    for k in range(2): a(f"v_mul_f32 v{A_[4*k]}, s60, v{A_[4*k]}")
    for k in range(2): a(f"v_mov_b32 v{A_[4*k+2]}, v{A_[4*k]}")
    a("s_nop 1")
    for k in range(2): a(f"v_permlane16_swap_b32 v{A_[4*k]}, v{A_[4*k+2]}")
    a("s_nop 1")
    for k in range(4): a(f"v_mov_b32 v{A_[2*k+1]}, v{A_[2*k]}")
    a("s_nop 1")
    for k in range(4): a(f"v_permlane32_swap_b32 v{A_[2*k]}, v{A_[2*k+1]}")
    a("s_nop 1")
    for p in range(2):
        for h in range(4):
            for r in range(4): a(f"v_fma_f32 v{OWN[p][h]+r}, v{OWN[p][h]+r}, s60, -v{A_[p*4+h]}")
    for p in range(2):
        for h in range(4):
            for r in range(4): a(f"v_exp_f32 v{OWN[p][h]+r}, v{OWN[p][h]+r}")
    for p in range(2):
        for h in range(4): pack(OWN[p][h], OWN[p][h])
    for p in range(2):
        for h in range(4):
            for k in range(2):
                a(f"v_and_b32 v{PRV[p][h]+k}, v{OWN[p][h]+k}, v{MO+k}")
                a(f"v_bfi_b32 v{PRV[p][h]+2+k}, v{MO+k}, 0, v{OWN[p][h]+k}")
    lq.waitall()
    a("s_nop 0")
    OH = [[128 + 4 * T for T in range(4)], [108, 112, 116, 120]]
    OL = [[None] + [144 + 4 * (T - 1) for T in range(1, 5)], [None, 124, 160, 164, 204]]
    for p in range(2):
        for h in range(4): mfma(a, OWN[p][h], ONES, PRV[p][h], "0", xt="v", yt="v")
    for p in range(2):
        for T in range(5):
            if T <= 3: mfma(a, OH[p][T], VP(p, T), PRV[p][T], "0", xt="v", yt="v")
            if T >= 1: mfma(a, OL[p][T], VP(p, T), PRV[p][T - 1], "0", xt="v", yt="v")
    for p in range(2):
        for h in range(4): a(f"v_rcp_f32 v{OWN[p][h]}, v{OWN[p][h]}")
    a("s_nop 4")
    OUT = lambda p, T: OH[p][T] if T <= 3 else OL[p][4]
    for T in range(5):
        if T <= 3:
            a(f"s_mov_b64 exec, {HI(T)}")
            for p in range(2):
                for r in range(4): a(f"v_mul_f32 v{OUT(p,T)+r}, v{OH[p][T]+r}, v{OWN[p][T]}")
        if T >= 1:
            a(f"s_mov_b64 exec, {LO(T)}")
            for p in range(2):
                for r in range(4): a(f"v_mul_f32 v{OUT(p,T)+r}, v{OL[p][T]+r}, v{OWN[p][T-1]}")
    a("s_mov_b64 exec, -1")
    odd = a.label("QC_ODD"); done = a.label("QC_DONE")
    a("s_and_b32 s60, s55, 1"); a("s_cmp_eq_u32 s60, 1"); a(f"s_cbranch_scc1 {odd}")
    def fin(pairs, single, skap, shalf):
        for p in range(2):
            for (T0, kap) in pairs:
                d = OUT(p, T0)
                pack(d, d); pack(d + 2, OUT(p, T0 + 1))
                a(f"buffer_store_dwordx4 {vr(d)}, v7, s[24:27], s{36+kap} offen offset:{p*1024}{o.sc}")
            d = OUT(p, single); pack(d, d)
            a(f"buffer_store_dwordx2 {vr(d,2)}, v7, s[24:27], s{36+skap} offen offset:{p*1024+shalf*8}{o.sc}")
    fin([(0, 0), (2, 1)], 4, 2, 0)
    a(f"s_branch {done}")
    a(f"{odd}:")
    fin([(1, 1), (3, 2)], 0, 0, 1)
    a(f"{done}:")
    trace(a, o, 0, 35)
    if o.trace: a("s_waitcnt vmcnt(0)")
    trace(a, o, 0, 36)
    trace_dump(a, o, 0, 22, 0, 8)
    if o.stamps:
        a.stamp(2); a("s_waitcnt vmcnt(0)"); a.stamp(3)
        a.dump_stamps(4, 0, 22, vtid="v0", tmp=("v8", "v9", "v10", "v11"))
    a("s_endpgm")

def f32bits(x):
    import struct
    return struct.unpack("<I", struct.pack("<f", x))[0]

def qkv_loader(a, o):
    if o.prio: a(f"s_setprio {o.prio}")
    x_voffs(a, 16, 2)
    def wv(dst, s):
        a(f"s_lshl_b32 s60, s59, 8"); a(f"s_add_u32 s60, s60, {s*64}")
        a(f"v_add_u32 v2, s60, v1")
        a("v_mul_u32_u24 v3, 2185, v2"); a("v_lshrrev_b32 v3, 16, v3")
        a("v_mul_u32_u24 v4, 30, v3"); a("v_sub_u32 v4, v2, v4")
        a("v_mul_u32_u24 v5, 205, v4"); a("v_lshrrev_b32 v5, 11, v5")
        a("v_and_b32 v6, 0x13, v3"); a("v_and_b32 v7, 4, v3"); a("v_lshl_or_b32 v6, v7, 1, v6")
        a("v_bfe_u32 v7, v3, 3, 1"); a("v_lshl_or_b32 v6, v7, 2, v6")
        a("v_mul_u32_u24 v6, 3840, v6"); a("v_mul_u32_u24 v5, 1120, v5")
        a("v_lshl_add_u32 v6, v4, 4, v6"); a("v_add_u32 v6, v6, v5")
        a(f"v_add_u32 v{dst}, s61, v6")
    a("s_mul_i32 s61, s55, 160")
    for s in range(3): wv(10 + s, s)
    hl = a.label("QL_H"); hd = a.label("QL_HD")
    a("s_cmp_eq_u32 s59, 3"); a(f"s_cbranch_scc1 {hl}")
    wv(13, 3); a("v_mov_b32 v14, v13")
    a(f"s_branch {hd}")
    a(f"{hl}:")
    a("v_lshrrev_b32 v2, 3, v1"); a("v_lshlrev_b32 v2, 1, v2"); a("s_sub_u32 s60, s58, 16"); a("v_add_u32 v2, s60, v2")
    a("v_lshrrev_b32 v3, 4, v1"); a("v_and_b32 v4, 7, v1")
    for e in range(2):
        a(f"v_add_u32 v5, {e}, v2"); a("v_max_i32 v5, 0, v5"); a("v_mul_u32_u24 v5, 1280, v5")
        a(f"v_or_b32 v6, {4*e}, v3"); a("v_xor_b32 v6, v6, v4"); a(f"v_lshl_add_u32 v{13+e}, v6, 4, v5")
    a(f"{hd}:")
    a("s_waitcnt lgkmcnt(0)")
    srd(a, 24, 6, 0, 640 * 3840); srd(a, 28, 4, 0, 2048 * 1280)
    a("s_cmp_eq_u32 s59, 3")
    for k in range(4): a(f"s_cselect_b32 s{32+k}, s{28+k}, s{24+k}")
    a("s_lshl_b32 s45, s59, 12")
    a(f"s_add_u32 s46, s45, {QX}")
    a("s_add_u32 s43, s45, 3072"); a("s_add_u32 s44, s45, 18432")
    a("s_cmp_eq_u32 s59, 3"); a(f"s_cselect_b32 s43, {QH}, s43"); a(f"s_cselect_b32 s44, {QH+1024}, s44")
    a("s_mov_b32 s41, 0")
    def issue(fill=None):
        k = [0]
        def F():
            if fill: fill(k[0])
            k[0] += 1
        a("s_mul_i32 s36, s42, 245760"); a("s_add_u32 s37, s36, 122880"); a("s_lshl_b32 s38, s42, 7")
        a("s_cmp_eq_u32 s59, 3"); a("s_cselect_b32 s39, s38, s36"); a("s_cselect_b32 s40, s38, s37")
        a("s_add_u32 s49, s41, s46")
        for s in range(4):
            a(f"s_add_u32 m0, s49, {s*1024}"); a("s_nop 0")
            a(f"buffer_load_dwordx4 v{16+s}, s[28:31], s38 offen lds"); F()
        a("s_add_u32 s49, s41, s45")
        for s in range(3):
            a(f"s_add_u32 m0, s49, {s*1024}"); a("s_nop 0")
            a(f"buffer_load_dwordx4 v{10+s}, s[24:27], s36 offen lds"); F()
        a("s_add_u32 m0, s41, s43"); a("s_nop 0"); a("buffer_load_dwordx4 v13, s[32:35], s39 offen lds"); F()
        for s in range(3):
            a(f"s_add_u32 m0, s49, {s*1024+15360}"); a("s_nop 0")
            a(f"buffer_load_dwordx4 v{10+s}, s[24:27], s37 offen lds"); F()
        a("s_add_u32 m0, s41, s44"); a("s_nop 0"); a("buffer_load_dwordx4 v14, s[32:35], s40 offen lds"); F()
        adv_kd(a, 42); adv_stage(a, 41, QST)
    trace(a, o, 0, 30)
    issue(); issue()
    trace(a, o, 0, 31)
    if o.pipe:
        a("s_mov_b32 s48, 8")
        a("QL_LOOP:")
        a("s_waitcnt vmcnt(12)")
        if o.trace: a("s_add_u32 s97, s48, 2")
        trace(a, o, 0, "s97")
        a("s_barrier")
        if o.trace: a("s_add_u32 s97, s48, 18")
        trace(a, o, 0, "s97")
        issue()
        a("s_sub_u32 s48, s48, 1"); a("s_cmp_lg_u32 s48, 0"); a("s_cbranch_scc1 QL_LOOP")
        a("s_waitcnt vmcnt(12)"); trace(a, o, 0, 2); a("s_barrier")
        a("s_waitcnt vmcnt(0)"); trace(a, o, 0, 1); a("s_barrier")
        trace(a, o, 0, 36)
        trace_dump(a, o, 0, 22, 0, 8)
        a("s_endpgm")
        return
    slot0(a, 20, 2)
    a("v_mul_u32_u24 v20, 480, v20"); a("v_and_b32 v2, 3, v1"); a("v_lshl_add_u32 v20, v2, 3, v20")
    a("s_and_b32 s60, s59, 1"); a("s_mul_i32 s60, s60, 160"); a("s_add_u32 s60, s60, 288"); a("v_add_u32 v21, s60, v20")
    a("s_lshl_b32 s60, s59, 5"); a("s_add_u32 s60, s60, 160"); a("v_add_u32 v20, s60, v20")
    x_read_addr(a, 22, 23, QH, 2, wave=False)
    for r in range(32, 48): a(f"v_mov_b32 v{r}, 0")
    a("s_mov_b32 s47, 0")
    def halo(iss=None):
        if o.nohalo == 1:
            if iss: iss()
            return
        lq = LQ(a)
        R = []
        for half in range(2):
            b = half * 16
            R.append((half, f"ds_read_b128 {vr(b+12,4,'a')}, v{26+half}"))
            for h in range(2):
                im = half * 15360 + h * 3840
                R.append((half, f"ds_read_b64_tr_b16 {vr(b+2*h,2,'a')}, v24 offset:{im}"))
                R.append((half, f"ds_read_b64_tr_b16 {vr(b+4+2*h,2,'a')}, v24 offset:{im+160}"))
                R.append((half, f"ds_read_b64_tr_b16 {vr(b+8+2*h,2,'a')}, v25 offset:{im}"))
        if o.hv & 1: R = [(hf, re.sub(r"a\[(\d+):(\d+)\]", lambda m: f"v[{int(m.group(1))+64}:{int(m.group(2))+64}]", ins)) for hf, ins in R]
        if o.hv & 4: R = [(hf, ins if i % 2 == 0 else "s_nop 0") for i, (hf, ins) in enumerate(R)]
        if o.hv & 8: R = [(hf, re.sub(r", v2\d", ", v28", re.sub(r"offset:\d+", "", ins))) for i, (hf, ins) in enumerate(R)]
        def mm(half):
            b = half * 16
            if not (o.hv & 2): lq.wait(half)
            else: lq.q = []
            if o.nohalo == 2: return
            mfma(a, 32, b, b + 12, 32); mfma(a, 36, b + 12, b + 4, 36); mfma(a, 40, b + 8, b + 12, 40); mfma(a, 44, b + 12, b + 8, 44)
        cnt = [1, 2, 1, 2, 1, 1, 2, 1, 2, 1, 0, 0]
        def fill(k):
            for _ in range(cnt[k]):
                hf, ins = R.pop(0); a(ins); lq.issue(hf)
            if k == 6: mm(0)
            if k == 9:
                adv_stage(a, 47, QST)
                a("v_add_u32 v24, s47, v20"); a("v_add_u32 v25, s47, v21"); a("v_add_u32 v26, s47, v22"); a("v_add_u32 v27, s47, v23")
            if k == 11: mm(1)
        if iss: iss(fill)
        else:
            for k in range(12):
                if k < 11: a(f"s_sleep 1")
                fill(k)
    a("v_mov_b32 v28, 0")
    a("v_mov_b32 v24, v20"); a("v_mov_b32 v25, v21"); a("v_mov_b32 v26, v22"); a("v_mov_b32 v27, v23")
    a("s_mov_b32 s48, 8")
    a("QL_LOOP:")
    a("s_waitcnt vmcnt(12)")
    if o.trace: a("s_add_u32 s97, s48, 2")
    trace(a, o, 0, "s97")
    a("s_barrier")
    if o.trace: a("s_add_u32 s97, s48, 18")
    if o.trace == 4: trace(a, o, 0, "s97")
    halo(issue)
    if o.trace != 4: trace(a, o, 0, "s97")
    a("s_sub_u32 s48, s48, 1"); a("s_cmp_lg_u32 s48, 0"); a("s_cbranch_scc1 QL_LOOP")
    a("s_waitcnt vmcnt(12)"); trace(a, o, 0, 2); a("s_barrier"); halo()
    a("s_waitcnt vmcnt(0)"); trace(a, o, 0, 1); a("s_barrier"); halo()
    if o.pipe: a("s_barrier")
    a("s_lshl_b32 s60, s59, 9"); a(f"s_add_u32 s60, s60, {EXB}")
    a("v_lshl_add_u32 v2, v1, 3, s60")
    a(f"v_lshlrev_b32 v3, 3, v1"); a(f"v_add_u32 v3, {EXB}, v3")
    a("s_nop 4")
    for k in range(4):
        b = 32 + 4 * k
        a(f"v_cvt_pk_bf16_f32 v{b}, v{b}, v{b+1}"); a(f"v_cvt_pk_bf16_f32 v{b+1}, v{b+2}, v{b+3}")
    for p in range(2):
        a(f"ds_write_b64 v2, v[32:33] offset:{p*5120}")
        a(f"ds_write_b64 v2, v[36:37] offset:{p*5120+2560}")
    l1 = a.label("QL_C"); l2 = a.label("QL_C")
    a("s_cmp_lg_u32 s59, 0"); a(f"s_cbranch_scc1 {l1}")
    for p in range(2): a(f"ds_write_b64 v3, v[40:41] offset:{p*5120+2048}")
    a(f"{l1}:")
    a("s_cmp_lg_u32 s59, 1"); a(f"s_cbranch_scc1 {l2}")
    for p in range(2): a(f"ds_write_b64 v3, v[44:45] offset:{p*5120+2560+2048}")
    a(f"{l2}:")
    a("s_waitcnt lgkmcnt(0)"); a("s_barrier")
    trace(a, o, 0, 36)
    trace_dump(a, o, 0, 22, 0, 8)
    a("s_endpgm")

def mlp_consumer(a, o):
    ACC = lambda p, T: 16 + (p * 12 + T) * 4
    a("s_waitcnt lgkmcnt(0)")
    srd(a, 28, 14, 0, 3072)
    a("v_lshrrev_b32 v9, 4, v1"); a("v_lshlrev_b32 v9, 3, v9"); a("s_mul_i32 s60, s55, 384")
    for T in range(12):
        a(f"buffer_load_dwordx2 {vr(ACC(1,T),2)}, v9, s[28:31], s60 offen offset:{T*32}")
    k1_prefetch(a, o, "M", True)
    slot0(a, 8, 9)
    a("v_bfe_u32 v9, v8, 1, 2")
    a("v_mul_u32_u24 v8, 384, v8"); a("v_and_b32 v10, 3, v1"); a("v_lshl_add_u32 v8, v10, 3, v8")
    for b in range(4):
        a(f"v_xor_b32 v10, {b}, v9"); a(f"v_lshl_add_u32 v{2+b}, v10, 5, v8")
    x_read_addr(a, 6, 7, MX, 9)
    srd(a, 24, 22, WS_A, 32 * 68 * 4096)
    a("s_lshl_b32 s36, s54, 1"); a("s_lshr_b32 s37, s59, 1"); a("s_add_u32 s36, s36, s37"); a("s_mul_i32 s36, s36, 68")
    a("s_mul_i32 s37, s55, 6"); a("s_add_u32 s37, s37, 20"); a("s_add_u32 s36, s36, s37"); a("s_lshl_b32 s36, s36, 12")
    a("s_and_b32 s37, s59, 1"); a("s_lshl_b32 s37, s37, 11"); a("s_add_u32 s36, s36, s37")
    for k in range(1, 6): a(f"s_add_u32 s{36+k}, s36, {4096*k}")
    for k in range(6): a(f"v_mov_b32 v{8+k}, v{2+k}")
    a("v_lshlrev_b32 v14, 4, v1")
    for T in range(12):
        s = ACC(1, T); d = ACC(0, T)
        a(f"v_lshlrev_b32 v{d}, 16, v{s}"); a(f"v_and_b32 v{d+1}, 0xffff0000, v{s}")
        a(f"v_lshlrev_b32 v{d+2}, 16, v{s+1}"); a(f"v_and_b32 v{d+3}, 0xffff0000, v{s+1}")
        for r in range(4): a(f"v_mov_b32 v{s+r}, v{d+r}")
    a("s_mov_b32 s47, 0"); a("s_mov_b32 s48, 10")
    if True:
        a("MC_LOOP:")
        trace(a, o, 0, "s48")
        a("s_barrier")
        if o.trace: a("s_add_u32 s97, s48, 16")
        trace(a, o, 0, "s97")
        if not o.nocomp: gemm_stage(a, 12, lambda half, h, T: (8 + (T & 3), half * 12288 + h * 3072 + (T >> 2) * 128), [12, 13], ACC, lambda T: True)
        adv_stage(a, 47, MST)
        for k in range(6): a(f"v_add_u32 v{8+k}, s47, v{2+k}")
        a("s_sub_u32 s48, s48, 1"); a("s_cmp_lg_u32 s48, 0"); a("s_cbranch_scc1 MC_LOOP")
    if o.stamps: a.stamp(1)
    trace(a, o, 0, 32)
    c1 = -2.0 * math.sqrt(2.0 / math.pi) * math.log2(math.e)
    c2 = c1 * 0.044715
    a(f"s_mov_b32 s60, {hex(f32bits(c1))}"); a(f"s_mov_b32 s61, {hex(f32bits(c2))}")
    a("v_mov_b32 v15, s60")
    a("s_nop 4")
    TMP = 112
    for p in range(2):
        for kp in range(6):
            z = [ACC(p, 2 * kp) + r for r in range(8)]
            t = [TMP + ((p * 6 + kp) % 2) * 8 + r for r in range(8)]
            for r in range(8): a(f"v_mul_f32 v{t[r]}, v{z[r]}, v{z[r]}")
            for r in range(8): a(f"v_fma_f32 v{t[r]}, v{t[r]}, s61, v15")
            for r in range(8): a(f"v_mul_f32 v{t[r]}, v{t[r]}, v{z[r]}")
            for r in range(8): a(f"v_exp_f32 v{t[r]}, v{t[r]}")
            for r in range(8): a(f"v_add_f32 v{t[r]}, 1.0, v{t[r]}")
            for r in range(8): a(f"v_rcp_f32 v{t[r]}, v{t[r]}")
            for r in range(8): a(f"v_mul_f32 v{z[r]}, v{z[r]}, v{t[r]}")
            for k in range(4): a(f"v_cvt_pk_bf16_f32 v{z[k]}, v{z[2*k]}, v{z[2*k+1]}")
            a(f"buffer_store_dwordx4 {vr(z[0])}, v14, s[24:27], s{36+kp} offen offset:{p*1024}{o.sc}")
    trace(a, o, 0, 35)
    if o.trace: a("s_waitcnt vmcnt(0)")
    trace(a, o, 0, 36)
    trace_dump(a, o, 0, 22, 0, 8)
    if o.stamps:
        a.stamp(2); a("s_waitcnt vmcnt(0)"); a.stamp(3)
        a.dump_stamps(4, 0, 22, vtid="v0", tmp=("v8", "v9", "v10", "v11"))
    a("s_endpgm")

def mlp_consumer2(a, o):
    code_warm(a, o)
    ACC = lambda p, T: 16 + (p * 6 + T) * 4
    a("s_and_b32 s57, s59, 1")
    a("s_waitcnt lgkmcnt(0)")
    srd(a, 28, 14, 0, 3072)
    a("v_lshrrev_b32 v9, 4, v1"); a("v_lshlrev_b32 v9, 3, v9"); a("s_mul_i32 s60, s55, 384"); a("s_mul_i32 s61, s57, 192"); a("s_add_u32 s60, s60, s61")
    for T in range(6):
        a(f"buffer_load_dwordx2 {vr(ACC(1,T),2)}, v9, s[28:31], s60 offen offset:{T*32}")
    slot0(a, 8, 9)
    a("v_bfe_u32 v9, v8, 1, 2")
    a("v_mul_u32_u24 v8, 384, v8"); a("v_and_b32 v10, 3, v1"); a("v_lshl_add_u32 v8, v10, 3, v8")
    a("s_lshl_b32 s60, s57, 1"); a("v_xor_b32 v9, s60, v9"); a("s_lshl_b32 s60, s57, 7"); a("v_add_u32 v8, s60, v8")
    for b in range(4):
        if b == 2: a("v_add_u32 v8, s60, v8")
        a(f"v_xor_b32 v10, {b}, v9"); a(f"v_lshl_add_u32 v{2+b}, v10, 5, v8")
    x_read_addr(a, 6, 7, MX, 9, wave=False)
    a("s_lshr_b32 s60, s59, 1"); a("s_lshl_b32 s60, s60, 13"); a("v_add_u32 v6, s60, v6"); a("v_add_u32 v7, s60, v7")
    srd(a, 24, 22, WS_A, 32 * 68 * 4096)
    a("s_lshl_b32 s36, s54, 1"); a("s_lshr_b32 s37, s59, 1"); a("s_add_u32 s36, s36, s37"); a("s_mul_i32 s36, s36, 68")
    a("s_mul_i32 s37, s55, 6"); a("s_add_u32 s37, s37, 20"); a("s_add_u32 s36, s36, s37"); a("s_mul_i32 s37, s57, 3"); a("s_add_u32 s36, s36, s37")
    a("s_lshl_b32 s36, s36, 12")
    for k in range(1, 3): a(f"s_add_u32 s{36+k}, s36, {4096*k}")
    for k in range(6): a(f"v_mov_b32 v{8+k}, v{2+k}")
    a("v_lshlrev_b32 v14, 4, v1")
    a("s_waitcnt vmcnt(0)")
    for T in range(6):
        s = ACC(1, T); d = ACC(0, T)
        a(f"v_lshlrev_b32 v{d}, 16, v{s}"); a(f"v_and_b32 v{d+1}, 0xffff0000, v{s}")
        a(f"v_lshlrev_b32 v{d+2}, 16, v{s+1}"); a(f"v_and_b32 v{d+3}, 0xffff0000, v{s+1}")
        for p in range(1, 4):
            for r in range(4): a(f"v_mov_b32 v{ACC(p,T)+r}, v{d+r}")
    a("s_mov_b32 s47, 0")
    advm = lambda: adv_list(47, MST) + [f"v_add_u32 v{8+k}, s47, v{2+k}" for k in range(6)]
    gemm_loop(a, o, "MC", 6, 4, lambda half, h, T: (8 + (T & 3), half * 12288 + h * 3072 + (T >> 2) * 128), [12, 13], ACC, lambda T: True, advm, 4, o.ml, 1)
    if o.stamps: a.stamp(1)
    trace(a, o, 0, 32)
    c1 = -2.0 * math.sqrt(2.0 / math.pi) * math.log2(math.e)
    c2 = c1 * 0.044715
    a(f"s_mov_b32 s60, {hex(f32bits(c1))}"); a(f"s_mov_b32 s61, {hex(f32bits(c2))}")
    a("v_mov_b32 v15, s60")
    a("s_nop 4")
    TMP = 112
    for p in range(4):
        for kp in range(3):
            z = [ACC(p, 2 * kp) + r for r in range(8)]
            t = [TMP + ((p * 3 + kp) % 2) * 8 + r for r in range(8)]
            for r in range(8): a(f"v_mul_f32 v{t[r]}, v{z[r]}, v{z[r]}")
            for r in range(8): a(f"v_fma_f32 v{t[r]}, v{t[r]}, s61, v15")
            for r in range(8): a(f"v_mul_f32 v{t[r]}, v{t[r]}, v{z[r]}")
            for r in range(8): a(f"v_exp_f32 v{t[r]}, v{t[r]}")
            for r in range(8): a(f"v_add_f32 v{t[r]}, 1.0, v{t[r]}")
            for r in range(8): a(f"v_rcp_f32 v{t[r]}, v{t[r]}")
            for r in range(8): a(f"v_mul_f32 v{z[r]}, v{z[r]}, v{t[r]}")
            for k in range(4): a(f"v_cvt_pk_bf16_f32 v{z[k]}, v{z[2*k]}, v{z[2*k+1]}")
            a(f"buffer_store_dwordx4 {vr(z[0])}, v14, s[24:27], s{36+kp} offen offset:{p*1024}{o.sc}")
    trace(a, o, 0, 35)
    if o.trace: a("s_waitcnt vmcnt(0)")
    trace(a, o, 0, 36)
    trace_dump(a, o, 0, 22, 0, 8)
    if o.stamps:
        a.stamp(2); a("s_waitcnt vmcnt(0)"); a.stamp(3)
        a.dump_stamps(4, 0, 22, vtid="v0", tmp=("v8", "v9", "v10", "v11"))
    a("s_waitcnt lgkmcnt(0)")
    a("s_endpgm")

def mlp_loader(a, o):
    if o.prio: a(f"s_setprio {o.prio}")
    x_voffs(a, 16, 2)
    a("s_mul_i32 s61, s55, 384"); a("s_mul_i32 s60, s59, 49152"); a("s_add_u32 s61, s61, s60")
    for b in range(3):
        a(f"v_add_u32 v2, {64*b}, v1")
        a("v_mul_u32_u24 v3, 2731, v2"); a("v_lshrrev_b32 v3, 16, v3")
        a("v_mul_u32_u24 v4, 24, v3"); a("v_sub_u32 v4, v2, v4")
        a("v_and_b32 v5, 6, v3"); a("v_xor_b32 v4, v4, v5")
        a("v_and_b32 v6, 3, v3"); a("v_and_b32 v7, 4, v3"); a("v_lshl_or_b32 v6, v7, 1, v6")
        a("v_mul_u32_u24 v6, 3072, v6"); a("v_lshl_add_u32 v6, v4, 4, v6")
        a(f"v_add_u32 v{10+b}, s61, v6")
    a("v_lshlrev_b32 v9, 4, v1")
    a("s_waitcnt lgkmcnt(0)")
    srd(a, 24, 12, 0, 640 * 3072); srd(a, 28, 4, 0, 2048 * 1280); srd(a, 32, 20, 0, 1280)
    a("s_mul_i32 s45, s59, 6144"); a("s_lshl_b32 s46, s59, 12"); a(f"s_add_u32 s46, s46, {MX}")
    a("s_mov_b32 s41, 0"); a("s_mov_b32 s43, s42")
    a("s_and_b32 s60, s59, 1"); a("s_lshl_b32 s60, s60, 10"); a("v_add_u32 v8, s60, v9"); a("v_min_u32 v8, 1264, v8")
    a(f"s_add_u32 m0, s60, {MGATE}"); a("s_nop 0")
    a("buffer_load_dwordx4 v8, s[32:35], 0 offen lds")
    def issue(fill=None):
        k = [0]
        def F():
            if fill: fill(k[0])
            k[0] += 1
        a("s_mul_i32 s36, s42, 196608"); a("s_add_u32 s37, s36, 12288"); a("s_lshl_b32 s38, s42, 7")
        a("s_add_u32 s49, s41, s46")
        for s in range(4):
            a(f"s_add_u32 m0, s49, {s*1024}"); a("s_nop 0")
            a(f"buffer_load_dwordx4 v{16+s}, s[28:31], s38 offen lds"); F()
        a("s_add_u32 s49, s41, s45")
        for e in range(2):
            for b in range(3):
                a(f"s_add_u32 m0, s49, {(3*e+b)*1024}"); a("s_nop 0")
                a(f"buffer_load_dwordx4 v{10+b}, s[24:27], s{36+e} offen lds"); F()
        adv_kd(a, 42); adv_stage(a, 41, MST)
    trace(a, o, 0, 30)
    issue(); issue()
    trace(a, o, 0, 31)
    x_read_addr(a, 22, 23, MX, 2)
    a("s_and_b32 s60, s55, 1"); a("s_lshl_b32 s60, s60, 11"); a("v_add_u32 v22, s60, v22"); a("v_add_u32 v23, s60, v23")
    a("v_lshrrev_b32 v20, 4, v1"); a("v_lshlrev_b32 v20, 4, v20"); a(f"v_add_u32 v20, {MGATE}, v20")
    for r in range(32, 40): a(f"v_mov_b32 v{r}, 0")
    a("s_mov_b32 s47, 0")
    a("s_lshr_b32 s80, s55, 1")
    def gate_adv():
        a("s_lshl_b32 s60, s43, 7")
        a("v_add_u32 v24, s60, v20"); a("v_add_u32 v25, s47, v22"); a("v_add_u32 v26, s47, v23")
    gate_adv()
    def gate(iss=None):
        if o.nohalo == 1:
            if iss: iss()
            return
        def fill(k):
            if k not in (2, 7): return
            sk = a.label("GSK")
            a("s_cmp_lg_u32 s80, s59"); a(f"s_cbranch_scc1 {sk}")
            if k == 2:
                for half in range(2):
                    a(f"ds_read_b128 {vr(half*8,4,'a')}, v24 offset:{half*64}")
                    a(f"ds_read_b128 {vr(half*8+4,4,'a')}, v{25+half}")
                adv_stage(a, 47, MST); adv_kd(a, 43); gate_adv()
            if k == 7:
                a("s_waitcnt lgkmcnt(0)")
                for half in range(2): mfma(a, 32 + 4 * half, half * 8, half * 8 + 4, 32 + 4 * half)
            a(f"{sk}:")
        if iss: iss(fill)
        else:
            a("s_sleep 2"); fill(2); fill(7)
    for s in range(5):
        a(f"v_add_u32 v2, {64*s}, v1")
        a("v_mul_u32_u24 v3, 6554, v2"); a("v_lshrrev_b32 v3, 16, v3")
        a("v_mul_u32_u24 v4, 10, v3"); a("v_sub_u32 v4, v2, v4")
        a("v_mul_u32_u24 v3, 1280, v3"); a(f"v_lshl_add_u32 v{40+s}, v4, 4, v3")
    a("s_mul_i32 s44, s59, 5120"); a(f"s_add_u32 s44, s44, {MSIDE}")
    a("v_lshrrev_b32 v2, 2, v1"); a("v_mul_u32_u24 v2, 160, v2"); a("v_add_u32 v2, s44, v2"); a("v_and_b32 v3, 3, v1")
    a("v_lshl_add_u32 v45, v3, 4, v2"); a("v_lshl_add_u32 v46, v3, 3, v2")
    a("s_lshl_b32 s62, s54, 3"); a("s_add_u32 s62, s62, s55")
    srd(a, 72, 22, WS_B, 8 * 68 * 5120)
    def side_issue():
        a("s_lshr_b32 s63, s62, 1"); a("s_and_b32 s64, s62, 1"); a("s_lshl_b32 s64, s64, 2"); a("s_add_u32 s64, s64, s59")
        a("s_cmp_lt_u32 s63, 20")
        a("s_cselect_b32 s68, s8, s16"); a("s_cselect_b32 s69, s9, s17"); a(f"s_mov_b32 s70, {1536*1280}"); a(f"s_cselect_b32 s70, {640*1280}, s70")
        a("s_cselect_b32 s65, 0, 20"); a("s_and_b32 s69, s69, 0xffff"); a("s_mov_b32 s71, 0x00020000")
        a("s_sub_u32 s65, s63, s65"); a("s_mul_i32 s65, s65, 40960"); a("s_mul_i32 s66, s64, 160"); a("s_add_u32 s65, s65, s66")
        for s in range(5):
            a(f"s_add_u32 m0, s44, {s*1024}"); a("s_nop 0")
            a(f"buffer_load_dwordx4 v{40+s}, s[68:71], s65 offen lds")
        a("s_mul_i32 s66, s64, 68"); a("s_add_u32 s66, s66, s63"); a("s_mul_i32 s66, s66, 5120"); a("s_add_u32 s67, s66, 4096")
    def side_finish():
        for t in range(5):
            for e in range(2):
                if t < 4: a(f"ds_read_b64_tr_b16 {vr(48+4*t+2*e,2)}, v45 offset:{e*2560+(t>>1)*64+(t&1)*8}")
                else: a(f"ds_read_b64_tr_b16 {vr(48+4*t+2*e,2)}, v46 offset:{e*2560+128}")
        a("s_waitcnt lgkmcnt(0)")
        for t in range(4): a(f"buffer_store_dwordx4 {vr(48+4*t)}, v9, s[72:75], s66 offen offset:{t*1024}{o.sc}")
        a(f"buffer_store_dwordx4 {vr(64)}, v9, s[72:75], s67 offen{o.sc}")
    a("s_mov_b32 s48, 8")
    a("ML_LOOP:")
    a("s_waitcnt vmcnt(10)")
    if o.trace: a("s_add_u32 s97, s48, 2")
    trace(a, o, 0, "s97")
    a("s_barrier")
    if o.trace: a("s_add_u32 s97, s48, 18")
    if o.trace == 4: trace(a, o, 0, "s97")
    gate(issue)
    if o.trace != 4: trace(a, o, 0, "s97")
    a("s_sub_u32 s48, s48, 1"); a("s_cmp_lg_u32 s48, 0"); a("s_cbranch_scc1 ML_LOOP")
    side_issue()
    a("s_waitcnt vmcnt(15)"); trace(a, o, 0, 2); a("s_barrier"); gate()
    a("s_waitcnt vmcnt(5)"); trace(a, o, 0, 1); a("s_barrier"); gate()
    if o.pipe: a("s_barrier")
    lg = a.label("ML_NOG")
    a("s_cmp_lg_u32 s80, s59"); a(f"s_cbranch_scc1 {lg}")
    srd(a, 76, 22, WS_G, 8192)
    a("s_lshl_b32 s60, s59, 5"); a("s_add_u32 s60, s60, s58"); a("s_and_b32 s61, s55, 1"); a("s_add_u32 s60, s60, s61"); a("s_lshl_b32 s60, s60, 2")
    a("v_lshlrev_b32 v2, 3, v1")
    a("s_nop 4")
    a("v_add_f32 v32, v32, v36"); a("v_mul_f32 v32, 0xbfb8aa3b, v32")
    a("v_exp_f32 v32, v32"); a("s_nop 0")
    a("v_add_f32 v32, 1.0, v32")
    a("v_rcp_f32 v32, v32")
    a("s_mov_b64 exec, 0xffff"); a("s_nop 0")
    a(f"buffer_store_dword v32, v2, s[76:79], s60 offen{o.sc}")
    a("s_mov_b64 exec, -1")
    a(f"{lg}:")
    a("s_waitcnt vmcnt(0)")
    trace(a, o, 0, 33)
    side_finish()
    if o.trace: a("s_waitcnt vmcnt(0)")
    trace(a, o, 0, 36)
    trace_dump(a, o, 0, 22, 0, 8)
    a("s_cmp_ge_u32 s62, 8"); a("s_cbranch_scc1 K1_EXIT")
    a("s_add_u32 s62, s62, 128")
    side_issue()
    a("s_waitcnt vmcnt(0)")
    side_finish()
    a("s_endpgm")

def k2(a, o):
    a.begin("gm2_kernel", 256, 256, 81920, vgpr=128, agpr=144)
    a("s_cmp_ge_u32 s2, 256"); a("s_cbranch_scc1 K2_EXIT")
    if o.stamps: a.stamp(0)
    a("s_load_dwordx2 s[4:5], s[0:1], 88")
    a("s_load_dwordx2 s[6:7], s[0:1], 56")
    a("s_load_dwordx2 s[8:9], s[0:1], 72")
    a("v_and_b32 v1, 63, v0"); a("v_lshrrev_b32 v2, 6, v0")
    a("s_and_b32 s50, s2, 7"); a("s_lshr_b32 s51, s2, 3")
    a("v_readfirstlane_b32 s3, v2")
    if o.k2map == 0:
        a("s_lshl_b32 s52, s50, 2"); a("s_lshr_b32 s53, s51, 3"); a("s_add_u32 s52, s52, s53"); a("s_and_b32 s53, s51, 7")
    else:
        a("s_lshr_b32 s52, s50, 1"); a("s_lshl_b32 s52, s52, 3"); a("s_lshr_b32 s53, s51, 2"); a("s_add_u32 s52, s52, s53")
        a("s_and_b32 s53, s50, 1"); a("s_lshl_b32 s53, s53, 2"); a("s_and_b32 s54, s51, 3"); a("s_add_u32 s53, s53, s54")
    a("s_lshl_b32 s54, s3, 4"); a("s_add_u32 s54, s54, 4"); a("s_cmp_eq_u32 s3, 0"); a("s_cselect_b32 s54, 0, s54")
    a("s_cselect_b32 s48, 4, 3")
    a("s_mul_i32 s36, s52, 68"); a("s_add_u32 s36, s36, s54"); a("s_lshl_b32 s36, s36, 12")
    a("s_mul_i32 s37, s53, 68"); a("s_add_u32 s37, s37, s54"); a("s_mul_i32 s37, s37, 5120")
    a("v_lshlrev_b32 v2, 4, v1"); a("v_add_u32 v3, 4096, v2")
    a("s_waitcnt lgkmcnt(0)")
    srd(a, 24, 4, WS_A, 32 * 68 * 4096); srd(a, 28, 4, WS_B, 8 * 68 * 5120)
    BUF = lambda n: (n % 4) * 36
    def loads(n):
        b = BUF(n)
        L = []
        for t in range(5):
            L.append(f"buffer_load_dwordx4 {vr(b+16+4*t,4,'a')}, v{2 if t<4 else 3}, s[28:31], s37 offen offset:{(t%4)*1024}{o.l2f}")
        for i in range(4):
            L.append(f"buffer_load_dwordx4 {vr(b+4*i,4,'a')}, v2, s[24:27], s36 offen offset:{i*1024}{o.l2f}")
        order = [L[5], L[0], L[6], L[1], L[7], L[2], L[8], L[3], L[4]]
        return order
    def adv(): a("s_add_u32 s36, s36, 4096"); a("s_add_u32 s37, s37, 5120")
    for n in range(3):
        for s in loads(n): a(s)
        adv()
    srd(a, 32, 6, 0, 1280); srd(a, 40, 4, WS_G, 8192); srd(a, 44, 8, 0, 2048 * 1280)
    ACC = lambda i, t: 8 + (i * 5 + t) * 4
    for r in range(8, 88): a(f"v_mov_b32 v{r}, 0")
    def step(n, ld, wait):
        a(f"s_waitcnt vmcnt({wait})")
        b = BUF(n)
        L = loads(n + 3) if ld else []
        k = 0
        for t in range(5):
            for i in range(4):
                mfma(a, ACC(i, t), b + 16 + 4 * t, b + 4 * i, ACC(i, t))
                if k % 2 == 1 and L: a(L.pop(0))
                k += 1
        for s in L: a(s)
        if ld: adv()
    a("K2_LOOP:")
    for n in range(4): step(n, True, 18)
    a("s_sub_u32 s48, s48, 1"); a("s_cmp_lg_u32 s48, 0"); a("s_cbranch_scc1 K2_LOOP")
    step(0, True, 18)
    a("v_and_b32 v4, 15, v1"); a("v_lshrrev_b32 v5, 4, v1")
    a("s_lshl_b32 s55, s52, 6"); a("s_lshr_b32 s56, s3, 1"); a("s_lshl_b32 s56, s56, 5"); a("s_add_u32 s55, s55, s56")
    a("s_and_b32 s56, s3, 1"); a("s_add_u32 s55, s55, s56")
    a("v_lshlrev_b32 v6, 3, v4"); a("s_lshl_b32 s56, s55, 2")
    a("buffer_load_dword v88, v6, s[40:43], s56 offen")
    a("v_lshlrev_b32 v6, 4, v5"); a("v_lshlrev_b32 v7, 3, v5"); a("s_mul_i32 s57, s53, 160")
    a("buffer_load_dwordx4 v[92:95], v6, s[32:35], s57 offen")
    a("buffer_load_dwordx4 v[96:99], v6, s[32:35], s57 offen offset:64")
    a("buffer_load_dwordx2 v[100:101], v7, s[32:35], s57 offen offset:128")
    step(1, False, 22); step(2, False, 13); step(3, False, 4)
    if o.stamps: a.stamp(1)
    a("v_mul_u32_u24 v4, 2560, v4"); a("v_add_u32 v6, v4, v6"); a("v_add_u32 v7, v4, v7")
    a("s_mul_i32 s56, s55, 1280"); a("s_add_u32 s56, s56, s57")
    a("s_mul_i32 s58, s3, 20480"); a("v_add_u32 v4, s58, v2")
    a("s_mul_i32 s58, s3, 5120"); a("v_add_u32 v5, s58, v2")
    a("s_nop 4")
    for i in range(4):
        for t in range(5): a(f"ds_write_b128 v4, {vr(ACC(i,t))} offset:{(i*5+t)*1024}")
    a("s_waitcnt lgkmcnt(0)"); a("s_barrier")
    P = lambda w, t: 8 + (w * 5 + t) * 4
    for w in range(3):
        for t in range(5): a(f"ds_read_b128 {vr(P(w,t))}, v5 offset:{w*20480+t*1024}")
    a("v_add_u32 v5, 61440, v5")
    a("s_waitcnt vmcnt(0)")
    for k in range(10):
        s = 92 + k
        a(f"v_lshlrev_b32 v{104+2*k}, 16, v{s}"); a(f"v_and_b32 v{105+2*k}, 0xffff0000, v{s}")
    a("s_waitcnt lgkmcnt(5)")
    for t in range(5): a(f"ds_read_b128 {vr(P(3,t))}, v5 offset:{t*1024}")
    a("v_sub_f32 v89, 1.0, v88")
    B2 = lambda t, r: 104 + (t * 4 + r)
    for t in range(5):
        for r in range(4): a(f"v_add_f32 v{B2(t,r)}, v{B2(t,r)}, v{P(1,t)+r}")
    a("s_waitcnt lgkmcnt(5)")
    for t in range(5):
        for r in range(4): a(f"v_add_f32 v{B2(t,r)}, v{B2(t,r)}, v{P(2,t)+r}")
    for t in range(5):
        for r in range(4): a(f"v_mul_f32 v{P(0,t)+r}, v88, v{P(0,t)+r}")
    a("s_waitcnt lgkmcnt(0)")
    for t in range(5):
        for r in range(4): a(f"v_add_f32 v{B2(t,r)}, v{B2(t,r)}, v{P(3,t)+r}")
    for t in range(5):
        for r in range(4): a(f"v_fma_f32 v{B2(t,r)}, v89, v{B2(t,r)}, v{P(0,t)+r}")
    for k in range(10): a(f"v_cvt_pk_bf16_f32 v{8+k}, v{104+2*k}, v{105+2*k}")
    a(f"buffer_store_dwordx4 v[8:11], v6, s[44:47], s56 offen{o.osc}")
    a(f"buffer_store_dwordx4 v[12:15], v6, s[44:47], s56 offen offset:64{o.osc}")
    a(f"buffer_store_dwordx2 v[16:17], v7, s[44:47], s56 offen offset:128{o.osc}")
    if o.stamps:
        a.stamp(2); a("s_waitcnt vmcnt(0)"); a.stamp(3)
        a.dump_stamps(4, 1, 4, vtid="v0", tmp=("v20", "v21", "v22", "v23"))
    a("K2_EXIT:"); a("s_endpgm")

def k2v2(a, o):
    NB = o.nb
    a.begin("gm2_kernel", 256, 256, 147456 if o.k2dma else 81920, vgpr=128, agpr=36 * NB)
    a("s_cmp_ge_u32 s2, 256"); a("s_cbranch_scc1 K2_EXIT")
    if o.stamps: a.stamp(0)
    a("s_load_dwordx2 s[4:5], s[0:1], 88")
    a("s_load_dwordx2 s[6:7], s[0:1], 56")
    a("s_load_dwordx2 s[8:9], s[0:1], 72")
    a("v_and_b32 v1, 63, v0"); a("v_lshrrev_b32 v2, 6, v0")
    a("s_and_b32 s50, s2, 7"); a("s_lshr_b32 s51, s2, 3")
    a("v_readfirstlane_b32 s3, v2")
    a("s_lshr_b32 s52, s50, 1"); a("s_lshl_b32 s52, s52, 3"); a("s_lshr_b32 s55, s51, 2")
    a("s_and_b32 s53, s50, 1"); a("s_lshl_b32 s53, s53, 2"); a("s_and_b32 s54, s51, 3")
    if o.pf2:
        a("s_lshr_b32 s60, s51, 3"); a("s_mul_i32 s60, s60, 17")
        a("s_and_b32 s61, s51, 7"); a("s_add_u32 s61, s61, s52"); a("s_mul_i32 s61, s61, 68"); a("s_add_u32 s61, s61, s60"); a("s_lshl_b32 s61, s61, 12")
        a("s_bfe_u32 s62, s51, 0x20001"); a("s_add_u32 s62, s62, s53"); a("s_mul_i32 s62, s62, 68"); a("s_add_u32 s62, s62, s60"); a("s_mul_i32 s62, s62, 5120")
        a("s_and_b32 s63, s51, 1"); a("s_mul_i32 s63, s63, 2560"); a("s_add_u32 s62, s62, s63"); a(f"s_add_u32 s62, s62, {WS_B - 4096}")
        a("v_lshlrev_b32 v4, 7, v1"); a("v_cmp_gt_u32 vcc, 32, v1")
        a("v_mov_b32 v5, s62"); a("v_mov_b32 v6, s61"); a("v_cndmask_b32 v5, v5, v6, vcc"); a("v_add_u32 v4, v4, v5")
        a("v_mov_b32 v5, 5120"); a("v_mov_b32 v6, 4096"); a("v_cndmask_b32 v5, v5, v6, vcc")
        a("v_mul_u32_u24 v6, s3, v5"); a("v_add_u32 v4, v4, v6"); a("v_lshlrev_b32 v5, 2, v5")
    a("s_add_u32 s52, s52, s55"); a("s_add_u32 s53, s53, s54")
    a("s_mul_i32 s56, s3, 17")
    a("s_mul_i32 s36, s52, 68"); a("s_add_u32 s36, s36, s56"); a("s_lshl_b32 s36, s36, 12")
    a("s_mul_i32 s37, s53, 68"); a("s_add_u32 s37, s37, s56"); a("s_mul_i32 s37, s37, 5120")
    if o.rot2:
        a("s_add_u32 s38, s36, 69632"); a("s_mov_b32 s39, s36"); a("s_mov_b32 s49, s37")
        a("s_lshl_b32 s57, s55, 1"); a("s_lshl_b32 s58, s54, 2"); a("s_add_u32 s57, s57, s58")
        if o.rot2 == 2: a("s_lshl_b32 s57, s54, 2")
        if o.rot2 == 3: a("s_lshl_b32 s57, s55, 1")
        a("s_sub_u32 s58, s57, 17"); a("s_cmp_ge_u32 s57, 17"); a("s_cselect_b32 s57, s58, s57")
        a("s_lshl_b32 s58, s57, 12"); a("s_add_u32 s36, s36, s58"); a("s_mul_i32 s58, s57, 5120"); a("s_add_u32 s37, s37, s58")
    a("v_lshlrev_b32 v2, 4, v1"); a("v_add_u32 v3, 4096, v2")
    a("s_waitcnt lgkmcnt(0)")
    srd(a, 24, 4, WS_A, 32 * 68 * 4096); srd(a, 28, 4, WS_B, 8 * 68 * 5120)
    npf = 0
    if o.pf2:
        srd(a, 64, 4, 0, WS_B + 8 * 68 * 5120)
        a("s_mov_b32 exec_hi, 0xfffff")
        for k in range(5):
            if k == 4:
                a("s_cmp_lg_u32 s3, 0"); a("s_cbranch_scc1 K2_PFD")
            a(f"buffer_load_dword v{7}, v4, s[64:67], 0 offen")
            if k < 4: a("v_add_u32 v4, v4, v5")
        a("K2_PFD:")
        a("s_mov_b64 exec, -1")
        if o.pfw: a(f"s_waitcnt vmcnt({o.pfw - 1})");
        if o.pfw: a("s_barrier")
    BUF = lambda n: (n % NB) * 36
    def loads(n):
        b = BUF(n)
        L = []
        for t in range(5):
            L.append(f"buffer_load_dwordx4 {vr(b+16+4*t,4,'a')}, v{2 if t<4 else 3}, s[28:31], s37 offen offset:{(t%4)*1024}{o.l2f}")
        for i in range(4):
            L.append(f"buffer_load_dwordx4 {vr(b+4*i,4,'a')}, v2, s[24:27], s36 offen offset:{i*1024}{o.l2f}")
        order = [L[5], L[0], L[6], L[1], L[7], L[2], L[8], L[3], L[4]]
        if o.k2dma:
            lb = (n % NB) * 9216
            order = []
            for i in range(4):
                order.append(f"s_add_u32 m0, s75, {lb}\nbuffer_load_dwordx4 v2, s[24:27], s36 offen offset:{i*1024} lds")
                order.append(f"s_add_u32 m0, s75, {lb+4096}\nbuffer_load_dwordx4 v2, s[28:31], s37 offen offset:{i*1024} lds")
            order.append(f"s_add_u32 m0, s75, {lb+8192}\nbuffer_load_dwordx4 v3, s[28:31], s37 offen lds")
        return order
    if o.k2dma: a(f"s_mul_i32 s75, s3, {NB*9216}")
    def adv():
        a("s_add_u32 s36, s36, 4096"); a("s_add_u32 s37, s37, 5120")
        if o.rot2:
            a("s_cmp_eq_u32 s36, s38"); a("s_cselect_b32 s36, s39, s36"); a("s_cselect_b32 s37, s49, s37")
    if o.k2rep:
        a("s_mov_b32 s70, s36"); a("s_mov_b32 s71, s37"); a("s_mov_b32 s72, s26"); a("s_mov_b32 s73, s30"); a("s_mov_b32 s74, 0")
        a("K2_REP:")
    for n in range(NB - 1):
        for s in loads(n): a(s)
        adv()
    srd(a, 32, 6, 0, 1280); srd(a, 40, 4, WS_G, 8192); srd(a, 44, 8, 0, 2048 * 1280)
    a("v_and_b32 v4, 15, v1"); a("v_lshrrev_b32 v5, 4, v1")
    a("s_lshl_b32 s55, s52, 6"); a("s_lshr_b32 s56, s3, 1"); a("s_lshl_b32 s56, s56, 5"); a("s_add_u32 s55, s55, s56")
    a("s_and_b32 s56, s3, 1"); a("s_add_u32 s55, s55, s56")
    a("v_lshlrev_b32 v6, 3, v4"); a("s_lshl_b32 s56, s55, 2")
    a("v_lshlrev_b32 v90, 4, v5"); a("v_lshlrev_b32 v91, 3, v5"); a("s_mul_i32 s57, s53, 160")
    ACC = lambda i, t: 8 + (i * 5 + t) * 4
    for r in range(8, 88): a(f"v_mov_b32 v{r}, 0")
    W = 9 * (NB - 2)
    def step(n, wait):
        a(f"s_waitcnt vmcnt({wait})")
        b = BUF(n)
        L = loads(n + NB - 1)
        k = 0
        for t in range(5):
            for i in range(4):
                if not o.k2nomf: mfma(a, ACC(i, t), b + 16 + 4 * t, b + 4 * i, ACC(i, t))
                if k % 2 == 1 and L: a(L.pop(0))
                k += 1
        for s in L: a(s)
        adv()
    nreal = 17 - (NB - 1)
    a("s_mov_b32 s48, 0")
    a("K2_LOOP:")
    for n in range(NB):
        step(n, W)
        a("s_add_u32 s48, s48, 1")
        if nreal % NB == (n + 1) % NB:
            a(f"s_cmp_eq_u32 s48, {nreal}"); a("s_cselect_b32 s26, 0, s26"); a("s_cselect_b32 s30, 0, s30")
        if 17 % NB == (n + 1) % NB and n != NB - 1:
            a("s_cmp_eq_u32 s48, 17"); a("s_cbranch_scc1 K2_LEND")
    if 17 % NB == 0:
        a("s_cmp_lg_u32 s48, 17"); a("s_cbranch_scc1 K2_LOOP")
    else:
        a("s_branch K2_LOOP")
    a("K2_LEND:")
    if o.k2rep:
        a("s_cmp_lg_u32 s74, 0"); a("s_cbranch_scc1 K2_REPD")
        a("s_waitcnt vmcnt(0)"); a("s_barrier")
        a.stamp(4)
        a("s_mov_b32 s36, s70"); a("s_mov_b32 s37, s71"); a("s_mov_b32 s26, s72"); a("s_mov_b32 s30, s73"); a("s_mov_b32 s74, 1")
        a("s_branch K2_REP")
        a("K2_REPD:")
    a("buffer_load_dword v88, v6, s[40:43], s56 offen")
    a("buffer_load_dwordx4 v[92:95], v90, s[32:35], s57 offen")
    a("buffer_load_dwordx4 v[96:99], v90, s[32:35], s57 offen offset:64")
    a("buffer_load_dwordx2 v[100:101], v91, s[32:35], s57 offen offset:128")
    if o.stamps: a.stamp(1)
    a("v_mul_u32_u24 v4, 2560, v4"); a("v_add_u32 v6, v4, v90"); a("v_add_u32 v7, v4, v91")
    a("s_mul_i32 s56, s55, 1280"); a("s_add_u32 s56, s56, s57")
    a("s_mul_i32 s58, s3, 20480"); a("v_add_u32 v4, s58, v2")
    a("s_mul_i32 s58, s3, 5120"); a("v_add_u32 v5, s58, v2")
    a("s_nop 4")
    for i in range(4):
        for t in range(5): a(f"ds_write_b128 v4, {vr(ACC(i,t))} offset:{(i*5+t)*1024}")
    a("s_waitcnt lgkmcnt(0)"); a("s_barrier")
    P = lambda w, t: 8 + (w * 5 + t) * 4
    for w in range(3):
        for t in range(5): a(f"ds_read_b128 {vr(P(w,t))}, v5 offset:{w*20480+t*1024}")
    a("v_add_u32 v5, 61440, v5")
    a("s_waitcnt vmcnt(0)")
    for k in range(10):
        s = 92 + k
        a(f"v_lshlrev_b32 v{104+2*k}, 16, v{s}"); a(f"v_and_b32 v{105+2*k}, 0xffff0000, v{s}")
    a("s_waitcnt lgkmcnt(5)")
    for t in range(5): a(f"ds_read_b128 {vr(P(3,t))}, v5 offset:{t*1024}")
    a("v_sub_f32 v89, 1.0, v88")
    B2 = lambda t, r: 104 + (t * 4 + r)
    for t in range(5):
        for r in range(4): a(f"v_fma_f32 v{B2(t,r)}, v89, v{B2(t,r)}, v{P(0,t)+r}")
    for t in range(5):
        for r in range(4): a(f"v_add_f32 v{B2(t,r)}, v{B2(t,r)}, v{P(1,t)+r}")
    a("s_waitcnt lgkmcnt(5)")
    for t in range(5):
        for r in range(4): a(f"v_add_f32 v{B2(t,r)}, v{B2(t,r)}, v{P(2,t)+r}")
    a("s_waitcnt lgkmcnt(0)")
    for t in range(5):
        for r in range(4): a(f"v_add_f32 v{B2(t,r)}, v{B2(t,r)}, v{P(3,t)+r}")
    for k in range(10): a(f"v_cvt_pk_bf16_f32 v{8+k}, v{104+2*k}, v{105+2*k}")
    a(f"buffer_store_dwordx4 v[8:11], v6, s[44:47], s56 offen{o.osc}")
    a(f"buffer_store_dwordx4 v[12:15], v6, s[44:47], s56 offen offset:64{o.osc}")
    a(f"buffer_store_dwordx2 v[16:17], v7, s[44:47], s56 offen offset:128{o.osc}")
    if o.stamps:
        a.stamp(2); a("s_waitcnt vmcnt(0)"); a.stamp(3)
        a.dump_stamps(5 if o.k2rep else 4, 1, 4, vtid="v0", tmp=("v20", "v21", "v22", "v23"))
    a("K2_EXIT:"); a("s_endpgm")

def gen(o):
    global HALFREAD, GV
    HALFREAD = o.halfread; GV = o.gv
    a = Asm()
    k1(a, o); (k2v2 if o.k2v == 2 else k2)(a, o)
    a("CODE_END:")
    if o.k2dup: a.launch.append(a.launch[-1])
    if o.l1f: a.L = [l.replace("offen lds", "offen" + o.l1f + " lds") for l in a.L]
    if o.noload: a.L = [l for l in a.L if not (l.endswith("offen lds") and "s[68:71]" not in l)]
    return a.text()

if __name__ == "__main__":
    o = Opt()
    out = "gated_mix__sliding_local_dilated__dense_activation_gelu__prompt.s"
    for arg in sys.argv[1:]:
        if arg.startswith("out="): out = arg[4:]
        else:
            k, v = arg.split("=")
            cur = getattr(o, k)
            setattr(o, k, (" " + v.replace("+", " ") if v else "") if isinstance(cur, str) else type(cur)(int(v)))
    open(out, "w").write(gen(o))
```

```python
import sys, math, re
from asmlib import *

WS_A = 0
WS_B = 16 << 20
WS_G = 24 << 20
NEGINF = "0xff800000"
SC = " sc1"

class Opt:
    stamps = False
    k2map = 1
    rot = True
    sc = " sc1"
    osc = ""
    trace = 0
    l2f = ""
    l1f = ""
    nocomp = False
    noload = False
    nohalo = 0
    halfread = False
    k2v = 1
    nb = 6
    rot2 = 0
    pf2 = 0
    pfw = 0
    k2rep = 0
    gv = 0
    pf1 = 0
    pfs = 2
    k2dma = 0
    k2nomf = 0
    k2dup = 0
    pipe = 1
    pd = 0
    pl = 3
    pr = 0
    cw = 6
    dry = 0
    lay = 0
    nt = 8
    dry2 = 0
    l0 = 0
    pfd = 0
    bal = 0
    pfb = 0
    pfa = 0
    mld = 0
    pfp = 0
    cwl = 1
    hv = 0
    slp = 3
    prio = 3
    ml = 2

class LQ:
    def __init__(self, a):
        self.a = a; self.q = []
    def issue(self, tag):
        self.q.append(tag)
        assert len(self.q) <= 15, "too many outstanding lds ops"
    def wait(self, tag):
        if tag not in self.q: return
        last = max(i for i, t in enumerate(self.q) if t == tag)
        n = len(self.q) - 1 - last
        self.a(f"s_waitcnt lgkmcnt({n})")
        self.q = self.q[last + 1:]
    def waitall(self):
        self.a("s_waitcnt lgkmcnt(0)"); self.q = []

def srd(a, dst, lo, add=0, size=0x7fffffff):
    if add:
        a(f"s_add_u32 s{dst}, s{lo}, {add}"); a(f"s_addc_u32 s{dst+1}, s{lo+1}, 0")
        a(f"s_and_b32 s{dst+1}, s{dst+1}, 0xffff")
    else:
        a(f"s_mov_b32 s{dst}, s{lo}"); a(f"s_and_b32 s{dst+1}, s{lo+1}, 0xffff")
    a(f"s_mov_b32 s{dst+2}, {size}"); a(f"s_mov_b32 s{dst+3}, 0x00020000")

def vr(b, n=4, t="v"):
    return f"{t}[{b}:{b+n-1}]"

def mfma(a, d, x, y, c, dt="v", xt="a", yt="a"):
    cs = c if isinstance(c, str) else vr(c, 4, dt)
    a(f"v_mfma_f32_16x16x32_bf16 {vr(d,4,dt)}, {vr(x,4,xt)}, {vr(y,4,yt)}, {cs}")

QST = 49152
QX = 32768
QH = 30720
MST = 40960
MX = 24576
MGATE = 3 * MST
MSIDE = MGATE + 2048
EXB = QST
K1LDS = 3 * QST

def x_voffs(a, dst, tmp):
    t0, t1, t2 = tmp, tmp + 1, tmp + 2
    a(f"v_lshrrev_b32 v{t0}, 3, v1")
    a(f"v_lshrrev_b32 v{t1}, 4, v1")
    a(f"v_and_b32 v{t2}, 7, v1")
    a("s_lshl_b32 s60, s59, 5"); a("s_add_u32 s60, s60, s58")
    a("s_mul_i32 s60, s60, 1280")
    a(f"v_mul_u32_u24 v{t0}, 2560, v{t0}")
    a(f"v_add_u32 v{t0}, s60, v{t0}")
    for s in range(4):
        if s & 1:
            a(f"v_or_b32 v{dst+s}, 4, v{t1}")
            a(f"v_xor_b32 v{dst+s}, v{dst+s}, v{t2}")
        else:
            a(f"v_xor_b32 v{dst+s}, v{t1}, v{t2}")
        a(f"v_lshl_add_u32 v{dst+s}, v{dst+s}, 4, v{t0}")
        add = (16 * (s & 1) + (s >> 1)) * 1280
        if add: a(f"v_add_u32 v{dst+s}, {add}, v{dst+s}")

def x_read_addr(a, d0, d1, region, tmp, wave=True):
    t0, t1 = tmp, tmp + 1
    a(f"v_and_b32 v{t0}, 15, v1")
    a(f"v_lshrrev_b32 v{t1}, 1, v{t0}")
    a(f"v_lshrrev_b32 v{d0}, 4, v1")
    a(f"v_xor_b32 v{d0}, v{d0}, v{t1}")
    a(f"v_lshlrev_b32 v{d0}, 4, v{d0}")
    a(f"v_lshl_add_u32 v{d0}, v{t0}, 7, v{d0}")
    if wave:
        a("s_lshl_b32 s60, s59, 12"); a(f"s_add_u32 s60, s60, {region}")
        a(f"v_add_u32 v{d0}, s60, v{d0}")
    else:
        a(f"v_add_u32 v{d0}, {region}, v{d0}")
    a(f"v_xor_b32 v{d1}, 64, v{d0}")

def slot0(a, d, tmp):
    a(f"v_lshrrev_b32 v{d}, 5, v1"); a(f"v_lshlrev_b32 v{d}, 4, v{d}")
    a(f"v_bfe_u32 v{tmp}, v1, 2, 3")
    a(f"v_add_u32 v{d}, v{d}, v{tmp}")

def adv_stage(a, sreg, st):
    a(f"s_add_u32 s{sreg}, s{sreg}, {st}"); a(f"s_cmp_eq_u32 s{sreg}, {3*st}"); a(f"s_cselect_b32 s{sreg}, 0, s{sreg}")

def adv_kd(a, sreg):
    a(f"s_add_u32 s{sreg}, s{sreg}, 1"); a(f"s_cmp_eq_u32 s{sreg}, 10"); a(f"s_cselect_b32 s{sreg}, 0, s{sreg}")

TR_OFF = 210 << 20
def trace(a, o, vreg, idx):
    if not o.trace: return
    if o.trace in (2, 5) and isinstance(idx, str): return
    a("s_memrealtime s[98:99]")
    if isinstance(idx, str): a(f"s_mov_b32 m0, {idx}"); idx = "m0"
    a("s_waitcnt lgkmcnt(0)"); a(f"v_writelane_b32 v{vreg}, s98, {idx}")
def trace_clk(a, o, vreg, idx):
    if not o.trace: return
    a("s_memtime s[98:99]"); a("s_waitcnt lgkmcnt(0)"); a(f"v_writelane_b32 v{vreg}, s98, {idx}")
    a("s_memrealtime s[98:99]"); a("s_waitcnt lgkmcnt(0)"); a(f"v_writelane_b32 v{vreg}, s98, {idx+1}")
def trace_dump(a, o, vreg, wsp, launch, tmp):
    if not o.trace: return
    a("s_lshl_b32 s84, s2, 3"); a("s_add_u32 s84, s84, s3"); a("s_lshl_b32 s84, s84, 8")
    a(f"s_add_u32 s86, s{wsp}, {TR_OFF + launch*(1<<20)}"); a(f"s_addc_u32 s87, s{wsp+1}, 0")
    a("s_add_u32 s86, s86, s84"); a("s_addc_u32 s87, s87, 0")
    a(f"v_lshlrev_b32 v{tmp}, 2, v1")
    a(f"global_store_dword v{tmp}, v{vreg}, s[86:87]")

def k1(a, o):
    a.begin("gm1_kernel", 256, 512, K1LDS, vgpr=208, agpr=48)
    L_exit = "K1_EXIT"
    a("s_cmp_ge_u32 s2, 256"); a(f"s_cbranch_scc1 {L_exit}")
    if o.stamps: a.stamp(0)
    if o.lay == 1:
        a("s_getpc_b64 s[80:81]"); a("K1_PC:")
    a("s_load_dwordx4 s[4:7], s[0:1], 0")
    if o.lay == 1:
        a("s_bitcmp1_b32 s2, 7"); a("s_cselect_b32 s82, K1_ML-K1_PC-128, 0")
        a("s_add_u32 s84, s80, s82"); a("s_addc_u32 s85, s81, 0")
    a("s_load_dwordx8 s[12:19], s[0:1], 32")
    if o.lay == 1:
        for k in range(o.nt): a(f"s_load_dword s86, s[84:85], {128*(k+1)}")
    a("s_load_dwordx2 s[8:9], s[0:1], 16")
    a("s_load_dwordx2 s[20:21], s[0:1], 64")
    a("s_load_dwordx2 s[22:23], s[0:1], 88")
    a("v_and_b32 v1, 63, v0"); a("v_lshrrev_b32 v2, 6, v0")
    a("s_and_b32 s50, s2, 7"); a("s_lshr_b32 s51, s2, 3")
    a("v_readfirstlane_b32 s3, v2")
    a("s_and_b32 s52, s51, 7"); a("s_lshr_b32 s53, s51, 3")
    a("s_and_b32 s54, s50, 1"); a("s_lshl_b32 s54, s54, 3"); a("s_add_u32 s54, s54, s52")
    if o.lay == 2:
        a("s_cmp_ge_u32 s3, 4"); a("s_cbranch_scc1 K1_NT")
        a("s_getpc_b64 s[80:81]"); a("K1_PC:")
        a("s_bitcmp1_b32 s2, 7"); a("s_cselect_b32 s82, K1_ML-K1_PC-128, 0")
        a("s_add_u32 s84, s80, s82"); a("s_addc_u32 s85, s81, 0")
        for k in range(o.nt): a(f"s_load_dword s86, s[84:85], {128*(k+1)}")
        a("s_lshl_b32 s82, s51, 2"); a("s_add_u32 s82, s82, s3"); a("s_lshl_b32 s82, s82, 8")
        a("s_min_u32 s82, s82, CODE_END-K1_PC-132"); a("s_add_u32 s84, s80, s82"); a("s_addc_u32 s85, s81, 0")
        a("s_load_dword s86, s[84:85], 0"); a("s_load_dword s86, s[84:85], 128")
        a("K1_NT:")
    if o.lay == 1:
        a("s_lshl_b32 s82, s51, 3"); a("s_add_u32 s82, s82, s3"); a("s_lshl_b32 s82, s82, 7")
        a("s_min_u32 s82, s82, CODE_END-K1_PC-4"); a("s_add_u32 s84, s80, s82"); a("s_addc_u32 s85, s81, 0")
        a("s_load_dword s86, s[84:85], 0")
    a("s_and_b32 s55, s50, 6"); a("s_and_b32 s56, s53, 1"); a("s_add_u32 s55, s55, s56")
    if o.rot:
        a("s_mul_i32 s56, s52, 5"); a("s_mul_i32 s57, s53, 10"); a("s_add_u32 s56, s56, s57"); a("s_lshr_b32 s42, s56, 2")
        a("s_sub_u32 s56, s42, 10"); a("s_cmp_ge_u32 s42, 10"); a("s_cselect_b32 s42, s56, s42")
    else:
        a("s_mov_b32 s42, 0")
    if o.trace: a("v_mov_b32 v0, 0")
    trace(a, o, 0, 0)
    a("s_lshl_b32 s58, s54, 7")
    a("s_and_b32 s59, s3, 3")
    if o.lay:
        a("s_cmp_lt_u32 s3, 4"); a("s_cbranch_scc1 K1_CONS")
        a("s_cmp_ge_u32 s53, 2"); a("s_cbranch_scc1 K1_ML")
        a("K1_QL:")
        qkv_loader(a, o)
        a("K1_ML:")
        mlp_loader(a, o)
        a("K1_CONS:")
        a("s_cmp_ge_u32 s53, 2"); a("s_cbranch_scc1 K1_MC")
        qkv_consumer(a, o)
        a("K1_MC:")
        mlp_consumer2(a, o)
        a(f"{L_exit}:"); a("s_endpgm")
        return
    a("s_cmp_ge_u32 s53, 2"); a("s_cbranch_scc1 K1_MLP")
    a("s_cmp_ge_u32 s3, 4"); a("s_cbranch_scc1 K1_QL")
    qkv_consumer(a, o)
    a("K1_QL:")
    qkv_loader(a, o)
    a("K1_MLP:")
    a("s_cmp_ge_u32 s3, 4"); a("s_cbranch_scc1 K1_ML")
    (mlp_consumer2 if o.pipe else mlp_consumer)(a, o)
    a("K1_ML:")
    mlp_loader(a, o)
    a(f"{L_exit}:"); a("s_endpgm")

HALFREAD = False
GV = 0
def gemm_stage(a, ntile, wread, xaddr, acc, wfirst, D=6, XB=24):
    lq = LQ(a)
    NP = 2; ft = "a"; FB = 0
    if GV == 5:
        NP = 4; ntile = (ntile + 1) // 2; D = 4; XB = 16
        acc0 = acc; acc = lambda p, T: acc0(0, 0) + (p * ntile + T) * 4
    if GV == 4: ft = "v"; FB = 160 if ntile == 15 else 128; D = 6; XB = 24
    if GV == 3: D = 7; XB = 28
    def rdx(half, p):
        a(f"ds_read_b128 {vr(FB+XB+(half*NP+p)*4,4,ft)}, v{xaddr[half]} offset:{p*2048}"); lq.issue(("x", half, p))
    def rdw(f):
        half, T = divmod(f, ntile)
        if HALFREAD and (f & 1): return
        for h in range(2):
            va, imm = wread(half, h, T)
            a(f"ds_read_b64_tr_b16 {vr(FB+(f%D)*4+2*h,2,ft)}, v{va} offset:{imm}"); lq.issue(("w", f))
    nf = 2 * ntile
    rdx(0, 0); rdw(0)
    for p in range(1, NP): rdx(0, p)
    for f in range(1, D): rdw(f)
    for f in range(nf):
        half, T = divmod(f, ntile)
        if GV == 2:
            if f % 2 == 0: lq.wait(("w", min(f + 1, nf - 1)))
        else: lq.wait(("w", f))
        if T == 0: lq.wait(("x", half, 0))
        for p in range(NP):
            if T == 0 and p >= 1: lq.wait(("x", half, p))
            W = FB + (f % D) * 4; X = FB + XB + (half * NP + p) * 4
            if wfirst(T): mfma(a, acc(p, T), W, X, acc(p, T), xt=ft, yt=ft)
            else: mfma(a, acc(p, T), X, W, acc(p, T), xt=ft, yt=ft)
        if f + D < nf:
            rdw(f + D)
        if NP == 2:
            if f == ntile - D - 1: rdx(1, 0)
            if f == ntile - D: rdx(1, 1)
        else:
            if 0 <= f - (ntile - D - 2) < 4: rdx(1, f - (ntile - D - 2))


def gemm_loop(a, o, name, ntile, NP, wread, xaddr, acc, wfirst, advance, D, lead, rate=1, hrate=2, xoff=0, extra=None):
    from collections import deque
    lq = LQ(a)
    XB = 4 * D
    fifo = deque()
    def rdx(half, p):
        def fn():
            if p == NP: a(f"ds_read_b128 {vr(XB+(2*NP+half)*4,4,'a')}, v{xaddr[half]}")
            else: a(f"ds_read_b128 {vr(XB+(half*NP+p)*4,4,'a')}, v{xaddr[half]} offset:{xoff+p*2048}")
            lq.issue(("x", half, p))
        fifo.append(fn)
    def rdw(f):
        half, T = divmod(f, ntile)
        for h in range(2):
            def fn(h=h):
                va, imm = wread(half, h, T)
                a(f"ds_read_b64_tr_b16 {vr((f%D)*4+2*h,2,'a')}, v{va} offset:{imm}"); lq.issue(("w", f))
            fifo.append(fn)
    def drain(n):
        while fifo and n > 0:
            fifo.popleft()(); n -= 1
    nf = 2 * ntile
    assert nf % D == 0
    fs = nf - lead; c = D - lead
    def head():
        rdx(0, 0); rdw(0)
        for p in range(1, NP): rdx(0, p)
        for f in range(1, c): rdw(f)
        if extra: rdx(0, NP)
    a("s_mov_b32 s48, 10")
    trace(a, o, 0, 10)
    a("s_barrier")
    trace(a, o, 0, 26)
    trace_clk(a, o, 0, 40)
    head()
    for f in range(c, D): rdw(f)
    drain(99)
    a(f"{name}_LOOP:")
    for f in range(nf):
        half, T = divmod(f, ntile)
        if f == fs:
            drain(99)
            lq.waitall()
            if o.trace == 1: trace(a, o, 0, "s48")
            if o.dry: a(f"s_cbranch_execz {name}_NB")
            a("s_barrier")
            if o.dry: a(f"{name}_NB:")
            if o.trace == 1: a("s_add_u32 s97, s48, 16"); trace(a, o, 0, "s97")
            head()
        if f < fs:
            lq.wait(("w", f))
            if T == 0: lq.wait(("x", half, 0))
        for p in range(NP):
            if T == 0 and p >= 1 and f < fs: lq.wait(("x", half, p))
            W = (f % D) * 4; X = XB + (half * NP + p) * 4
            if wfirst(T): mfma(a, acc(p, T), W, X, acc(p, T))
            else: mfma(a, acc(p, T), X, W, acc(p, T))
            if p == NP - 1 and extra and T in extra:
                drain(1)
                if f < fs: lq.wait(("x", half, NP))
                X = XB + (2 * NP + half) * 4
                if wfirst(T): mfma(a, extra[T], W, X, extra[T])
                else: mfma(a, extra[T], X, W, extra[T])
            if p == NP - 1:
                if f + D < nf: rdw(f + D)
                elif f >= fs: rdw(c + f - fs)
                k = f - max(0, ntile - D - NP + 1)
                if 0 <= k < NP + (1 if extra else 0): rdx(1, k)
                if f + D == nf - 1:
                    for ins in advance() + ["s_sub_u32 s48, s48, 1"]: fifo.append(lambda ins=ins: a(ins))
                if f == nf - 1: a("s_cmp_lg_u32 s48, 0")
            drain(99 if (f == nf - 1 and p == NP - 1) else (hrate if (f >= fs or f + D >= nf - 1 or len(fifo) > 2) else rate))
    a(f"s_cbranch_scc1 {name}_LOOP")
    trace_clk(a, o, 0, 42)

def adv_list(sreg, st):
    return [f"s_add_u32 s{sreg}, s{sreg}, {st}", f"s_cmp_eq_u32 s{sreg}, {3*st}", f"s_cselect_b32 s{sreg}, 0, s{sreg}"]

def k1_prefetch(a, o, tag, wait=False):
    if not o.pf1:
        if wait: a("s_waitcnt vmcnt(0)")
        return
    S0 = o.pfs
    l1 = f"PF1_{tag}"; l2 = f"PF2_{tag}"; ld = f"PFD_{tag}"
    if o.pfd: a(f"s_sleep {o.pfd}")
    a("s_cmp_eq_u32 s3, 1"); a(f"s_cbranch_scc1 {l1}")
    a("s_cmp_eq_u32 s3, 2"); a(f"s_cbranch_scc1 {l2}")
    if wait:
        a("s_cmp_lg_u32 s3, 3"); a(f"s_cbranch_scc1 PF0_{tag}"); a("s_waitcnt vmcnt(0)"); a(f"s_branch {ld}"); a(f"PF0_{tag}:")
    else:
        a("s_cmp_eq_u32 s3, 3"); a(f"s_cbranch_scc1 {ld}")
    srd(a, 80, 4, 0, 2048 * 1280)
    a("s_and_b32 s60, s50, 1"); a("s_lshl_b32 s60, s60, 10"); a("s_lshl_b32 s61, s51, 5"); a("s_add_u32 s60, s60, s61"); a("s_mul_i32 s60, s60, 1280")
    a("v_lshrrev_b32 v201, 1, v1"); a("v_mul_u32_u24 v201, 1280, v201"); a("v_and_b32 v202, 1, v1"); a("v_lshl_add_u32 v201, v202, 6, v201")
    for kd in range(S0, 10):
        a(f"buffer_load_dword v200, v201, s[80:83], s60 offen offset:{kd*128}")
        if o.pfp and kd < 9: a(f"s_sleep {o.pfp}")
    if wait: a(f"s_waitcnt vmcnt({10-S0})")
    a(f"s_branch {ld}")
    for lab, ptr, rowb, nsec, segn, segb, pairb in ((l1, 6, 3840, 15, 5, 1280, 320), (l2, 12, 3072, 12, 12, 0, 768)):
        a(f"{lab}:")
        srd(a, 80, ptr, 0, 640 * rowb)
        a("v_and_b32 v201, 31, v1"); a(f"v_min_u32 v201, {2*nsec-1}, v201")
        a(f"v_cmp_le_u32 vcc, {nsec}, v201"); a("s_nop 1"); a("v_cndmask_b32 v202, 0, 1, vcc"); a(f"v_mul_u32_u24 v203, {nsec}, v202"); a("v_sub_u32 v201, v201, v203")
        a("v_lshrrev_b32 v203, 5, v1"); a("v_lshl_add_u32 v202, v203, 6, v202"); a(f"v_mul_u32_u24 v202, {rowb}, v202")
        if segb:
            a("v_mul_u32_u24 v203, 52, v201"); a("v_lshrrev_b32 v203, 8, v203")
            a(f"v_mul_u32_u24 v203, {segb - segn*64}, v203"); a("v_add_u32 v202, v202, v203")
        a("v_lshl_add_u32 v201, v201, 6, v202")
        a(f"s_lshr_b32 s60, s50, 1"); a(f"s_mul_i32 s60, s60, {pairb}"); a(f"s_mul_i32 s61, s51, {2*rowb}"); a("s_add_u32 s60, s60, s61")
        a(f"s_add_u32 s60, s60, {S0*64*rowb}"); a("v_add_u32 v201, s60, v201")
        R = list(range(S0, 10, 2))
        for kd in R:
            a(f"buffer_load_dword v200, v201, s[80:83], 0 offen"); a(f"v_add_u32 v201, {128*rowb}, v201")
            if o.pfp and kd != R[-1]: a(f"s_sleep {2*o.pfp}")
        if wait: a(f"s_waitcnt vmcnt({len(R)})")
        if lab == l1: a(f"s_branch {ld}")
    a(f"{ld}:")

def code_warm(a, o):
    if not o.cw: return
    n = o.cw
    a("s_getpc_b64 s[92:93]")
    a("CWL_%d:" % a.uid); lab = "CWL_%d" % a.uid; a.uid += 1
    a(f"s_sub_u32 s92, s92, {lab}-gm1_kernel"); a("s_subb_u32 s93, s93, 0")
    a("s_lshl_b32 s94, s51, 2"); a("s_add_u32 s94, s94, s59"); a(f"s_mul_i32 s94, s94, {64*n}")
    a("s_min_u32 s94, s94, CODE_END-gm1_kernel-%d" % (64 * n))
    a("s_add_u32 s92, s92, s94"); a("s_addc_u32 s93, s93, 0")
    for k in range(n): a(f"s_load_dword s95, s[92:93], {64*k}")

def qkv_consumer(a, o):
    if not o.cwl: code_warm(a, o)
    ACC = lambda p, T: 8 + (p * 15 + T) * 4
    QM = lambda p, h: 128 + p * 16 + h * 4
    KP = [160, 48]; VP = lambda p, T: (28 if p == 0 else 88) + 4 * T
    KQ = [108, 118]
    BO = 170; BP = [174, 178]; MO = 182; ONES = 184
    OWN = [[8, 12, 16, 20], [24, 84, 58, 62]]
    PRV = [[68, 72, 76, 80], [188, 192, 196, 200]]
    slot0(a, 2, 5)
    a("v_mul_u32_u24 v2, 480, v2"); a("v_and_b32 v5, 3, v1"); a("v_lshl_add_u32 v2, v5, 3, v2")
    if o.pipe: x_read_addr(a, 3, 4, QH, 5, wave=False)
    else: x_read_addr(a, 3, 4, QX, 5)
    if not o.dry:
        for r in range(8, 160): a(f"v_mov_b32 v{r}, 0")
    for r in range(4): a(f"v_mov_b32 v{ONES+r}, 0x3f803f80")
    a("v_and_b32 v5, 15, v1"); a("v_lshrrev_b32 v6, 4, v1"); a("v_lshlrev_b32 v6, 2, v6")
    a("s_mov_b32 s60, 9"); a("s_mov_b32 s61, 15"); a("s_mov_b32 s62, 9")
    a("s_cmp_eq_u32 s59, 0"); a("s_cselect_b32 s60, 1, s60"); a("s_cselect_b32 s61, 7, s61")
    a("s_or_b32 s63, s59, s58"); a("s_cmp_eq_u32 s63, 0"); a("s_cselect_b32 s60, 99, s60"); a("s_cselect_b32 s62, 99, s62")
    a(f"v_mov_b32 v{MO}, 0"); a(f"v_mov_b32 v{MO+1}, 0"); a(f"v_mov_b32 v204, {NEGINF}")
    for r in range(4):
        a(f"v_add_u32 v7, {r}, v6")
        a("v_sub_u32 v205, v5, v7")
        a("v_cmp_ge_u32 vcc, 7, v205")
        a("v_sub_u32 v206, v7, v5")
        a(f"v_mov_b32 v207, {'0xffff' if r % 2 == 0 else '0xffff0000'}")
        a(f"v_cndmask_b32 v{BO+r}, v204, 0, vcc")
        a(f"v_cndmask_b32 v207, 0, v207, vcc")
        a(f"v_or_b32 v{MO+r//2}, v{MO+r//2}, v207")
        a("v_cmp_le_i32 vcc, s60, v206"); a("v_cmp_ge_i32 s[64:65], s61, v7"); a("s_nop 0"); a("s_and_b64 vcc, vcc, s[64:65]")
        a("s_nop 1")
        a(f"v_cndmask_b32 v{BP[0]+r}, v204, 0, vcc")
        a("v_cmp_le_i32 vcc, s62, v206"); a("s_nop 1")
        a(f"v_cndmask_b32 v{BP[1]+r}, v204, 0, vcc")
    def setmasks():
        a("s_mov_b32 s66, 0xffff0000"); a("s_mov_b32 s67, -1"); a("s_mov_b32 s68, 0"); a("s_mov_b32 s69, -1")
        a("s_mov_b32 s70, 0"); a("s_mov_b32 s71, 0xffff0000")
        for T in range(3): a(f"s_not_b64 s[{72+2*T}:{73+2*T}], s[{66+2*T}:{67+2*T}]")
    ALL = "s[78:79]" if o.dry else "-1"
    if o.dry:
        for k in range(66, 80, 2): a(f"s_mov_b64 s[{k}:{k+1}], 0")
    else: setmasks()
    HI = lambda T: ALL if T == 0 else f"s[{64+2*T}:{65+2*T}]"
    LO = lambda T: ALL if T == 4 else f"s[{70+2*T}:{71+2*T}]"
    def qmark(k):
        if not o.dry: return
        a("s_cbranch_execz QC_REAL")
        if k < 4: a(f"QC_Q{k}:")
    a("s_waitcnt lgkmcnt(0)")
    if o.cwl: code_warm(a, o)
    k1_prefetch(a, o, "Q")
    srd(a, 24, 22, WS_A, 0 if o.dry else 32 * 68 * 4096)
    a("s_lshl_b32 s36, s54, 1"); a("s_lshr_b32 s37, s59, 1"); a("s_add_u32 s36, s36, s37"); a("s_mul_i32 s36, s36, 68")
    a("s_mul_i32 s37, s55, 5"); a("s_lshr_b32 s37, s37, 1"); a("s_add_u32 s36, s36, s37"); a("s_lshl_b32 s36, s36, 12")
    a("s_and_b32 s37, s59, 1"); a("s_lshl_b32 s37, s37, 11"); a("s_add_u32 s36, s36, s37")
    a("s_add_u32 s37, s36, 4096"); a("s_add_u32 s38, s36, 8192")
    a("s_mov_b32 s47, 0"); a("s_mov_b32 s48, 10")
    a("v_mov_b32 v5, v2"); a("v_mov_b32 v6, v3"); a("v_mov_b32 v7, v4")
    if o.pipe:
        advq = lambda: adv_list(47, QST) + ["v_add_u32 v5, s47, v2", "v_add_u32 v6, s47, v3", "v_add_u32 v7, s47, v4"]
        if o.dry:
            a("s_mov_b32 s48, 1"); a("s_mov_b64 exec, 0")
            for w in range(0, 4): a(f"s_cmp_eq_u32 s59, {w}"); a(f"s_cbranch_scc1 QC{w}_LOOP")
            a("QC_REAL:")
            a("s_mov_b64 exec, -1"); a("s_mov_b64 s[78:79], -1"); setmasks(); a(f"s_mov_b32 s26, {32*68*4096}"); a("s_mov_b32 s47, 0")
            a("s_waitcnt lgkmcnt(0)"); a("s_nop 7"); a("s_nop 7")
            for r in range(8, 160): a(f"v_mov_b32 v{r}, 0")
        for r in range(188, 200): a(f"v_mov_b32 v{r}, 0")
        for w in range(1, 4): a(f"s_cmp_eq_u32 s59, {w}"); a(f"s_cbranch_scc1 QC{w}_ENT")
        for w in range(4):
            a(f"QC{w}_ENT:")
            ex = {5 + w: 188, 10 + w: 192}
            if w == 0: ex[9] = 196
            if w == 1: ex[14] = 196
            gemm_loop(a, o, f"QC{w}", 15, 2, lambda half, h, T: (5, half * 15360 + h * 3840 + T * 32), [6, 7], ACC, lambda T: T < 10, advq, o.pd or 6, o.pl or 4, o.pr or 1,
                      xoff=2048 + 4096 * w, extra=ex)
            a(f"v_lshlrev_b32 v5, 3, v1"); a(f"v_add_u32 v5, {EXB}, v5"); a("s_nop 7")
            for b in (188, 192, 196)[:len(ex)]:
                a(f"v_cvt_pk_bf16_f32 v{b}, v{b}, v{b+1}"); a(f"v_cvt_pk_bf16_f32 v{b+1}, v{b+2}, v{b+3}")
            for p in range(2):
                a(f"ds_write_b64 v5, v[188:189] offset:{p*5120+w*512}")
                a(f"ds_write_b64 v5, v[192:193] offset:{p*5120+2560+w*512}")
                if w == 0: a(f"ds_write_b64 v5, v[196:197] offset:{p*5120+2048}")
                if w == 1: a(f"ds_write_b64 v5, v[196:197] offset:{p*5120+2560+2048}")
            if o.dry and w > 0: a(f"s_cbranch_execz QC_Q{w}")
            if w < 3: a("s_branch QC_EPI")
        a("QC_EPI:")
    else:
        a("QC_LOOP:")
        trace(a, o, 0, "s48")
        a("s_barrier")
        if o.trace: a("s_add_u32 s97, s48, 16")
        trace(a, o, 0, "s97")
        if not o.nocomp: gemm_stage(a, 15, lambda half, h, T: (5, half * 15360 + h * 3840 + T * 32), [6, 7], ACC, lambda T: T < 10)
        adv_stage(a, 47, QST)
        a("v_add_u32 v5, s47, v2"); a("v_add_u32 v6, s47, v3"); a("v_add_u32 v7, s47, v4")
        a("s_sub_u32 s48, s48, 1"); a("s_cmp_lg_u32 s48, 0"); a("s_cbranch_scc1 QC_LOOP")
    if o.stamps: a.stamp(1)
    trace(a, o, 0, 32)
    def pack(dst, src):
        a(f"v_cvt_pk_bf16_f32 v{dst}, v{src}, v{src+1}"); a(f"v_cvt_pk_bf16_f32 v{dst+1}, v{src+2}, v{src+3}")
    a("s_mul_i32 s60, s59, 10240"); a(f"s_add_u32 s60, s60, {EXB}")
    a("v_lshl_add_u32 v6, v1, 3, s60"); a("v_add_u32 v5, 10240, v6")
    a("v_lshlrev_b32 v7, 4, v1")
    a("s_nop 4")
    lq = LQ(a)
    skipw = a.label("QC_NOW")
    for p in range(2):
        for T in range(5): pack(KP[p] + 2 * T, ACC(p, 5 + T))
        for T in range(5): pack(VP(p, T), ACC(p, 10 + T))
    a("s_cmp_eq_u32 s59, 3"); a(f"s_cbranch_scc1 {skipw}")
    for p in range(2):
        for T in range(5): a(f"ds_write_b64 v5, {vr(KP[p]+2*T,2)} offset:{p*5120+T*512}")
        for T in range(5): a(f"ds_write_b64 v5, {vr(VP(p,T),2)} offset:{p*5120+2560+T*512}")
    a(f"{skipw}:")
    for T in range(5):
        if T <= 3:
            a(f"s_mov_b64 exec, {HI(T)}")
            for p in range(2): pack(QM(p, T), ACC(p, T))
        if T >= 1:
            a(f"s_mov_b64 exec, {LO(T)}")
            for p in range(2): pack(QM(p, T - 1) + 2, ACC(p, T))
    a(f"s_mov_b64 exec, {ALL}")
    a("s_nop 1")
    for p in range(2):
        for h in range(4): mfma(a, OWN[p][h], KP[p] + 2 * h, QM(p, h), BO, xt="v", yt="v")
    if o.dry: a("s_cbranch_execz QC_REAL")
    a("s_waitcnt lgkmcnt(0)")
    trace(a, o, 0, 33)
    a("s_barrier")
    if o.dry: a("QC_Q1:")
    trace(a, o, 0, 34)
    for p in range(2):
        for T in range(5): a(f"ds_read_b64 {vr(KQ[p]+2*T,2)}, v6 offset:{p*5120+T*512}"); lq.issue(("k", p))
    for p in range(2):
        for T in range(5):
            if p == 1 and T == 0: lq.wait(("k", 0))
            a(f"ds_read_b64 {vr(VP(p,T)+2,2)}, v6 offset:{p*5120+2560+T*512}"); lq.issue(("v", p))
    for p in range(2):
        lq.wait(("k", p))
        for h in range(4): mfma(a, PRV[p][h], KQ[p] + 2 * h, QM(p, h), BP[p], xt="v", yt="v")
    a("s_nop 7")
    MXA = [160 + i for i in range(8)]
    MXB = [48 + i for i in range(8)]
    for p in range(2):
        for h in range(4):
            for r in range(4): a(f"v_max_f32 v{OWN[p][h]+r}, v{OWN[p][h]+r}, v{PRV[p][h]+r}")
    for p in range(2):
        for h in range(4):
            b = OWN[p][h]
            a(f"v_max3_f32 v{MXA[p*4+h]}, v{b}, v{b+1}, v{b+2}")
    for p in range(2):
        for h in range(4):
            a(f"v_max_f32 v{MXA[p*4+h]}, v{MXA[p*4+h]}, v{OWN[p][h]+3}")
    a("s_nop 1")
    A_ = MXA
    for k in range(4): a(f"v_permlane32_swap_b32 v{A_[2*k]}, v{A_[2*k+1]}")
    a("s_nop 0")
    for k in range(4): a(f"v_max_f32 v{A_[2*k]}, v{A_[2*k]}, v{A_[2*k+1]}")
    a("s_nop 1")
    for k in range(2): a(f"v_permlane16_swap_b32 v{A_[4*k]}, v{A_[4*k+2]}")
    a("s_nop 1")
    for k in range(2): a(f"v_max_f32 v{A_[4*k]}, v{A_[4*k]}, v{A_[4*k+2]}")
    a(f"s_mov_b32 s60, {hex(f32bits(20 ** -0.5 * math.log2(math.e)))}")
    for k in range(2): a(f"v_mul_f32 v{A_[4*k]}, s60, v{A_[4*k]}")
    for k in range(2): a(f"v_mov_b32 v{A_[4*k+2]}, v{A_[4*k]}")
    a("s_nop 1")
    for k in range(2): a(f"v_permlane16_swap_b32 v{A_[4*k]}, v{A_[4*k+2]}")
    a("s_nop 1")
    for k in range(4): a(f"v_mov_b32 v{A_[2*k+1]}, v{A_[2*k]}")
    a("s_nop 1")
    for k in range(4): a(f"v_permlane32_swap_b32 v{A_[2*k]}, v{A_[2*k+1]}")
    a("s_nop 1")
    for p in range(2):
        for h in range(4):
            for r in range(4): a(f"v_fma_f32 v{OWN[p][h]+r}, v{OWN[p][h]+r}, s60, -v{A_[p*4+h]}")
    qmark(2)
    for p in range(2):
        for h in range(4):
            for r in range(4): a(f"v_exp_f32 v{OWN[p][h]+r}, v{OWN[p][h]+r}")
    for p in range(2):
        for h in range(4): pack(OWN[p][h], OWN[p][h])
    for p in range(2):
        for h in range(4):
            for k in range(2):
                a(f"v_and_b32 v{PRV[p][h]+k}, v{OWN[p][h]+k}, v{MO+k}")
                a(f"v_bfi_b32 v{PRV[p][h]+2+k}, v{MO+k}, 0, v{OWN[p][h]+k}")
    lq.waitall()
    a("s_nop 0")
    OH = [[128 + 4 * T for T in range(4)], [108, 112, 116, 120]]
    OL = [[None] + [144 + 4 * (T - 1) for T in range(1, 5)], [None, 124, 160, 164, 204]]
    for p in range(2):
        for h in range(4): mfma(a, OWN[p][h], ONES, PRV[p][h], "0", xt="v", yt="v")
    for p in range(2):
        for T in range(5):
            if T <= 3: mfma(a, OH[p][T], VP(p, T), PRV[p][T], "0", xt="v", yt="v")
            if T >= 1: mfma(a, OL[p][T], VP(p, T), PRV[p][T - 1], "0", xt="v", yt="v")
    for p in range(2):
        for h in range(4): a(f"v_rcp_f32 v{OWN[p][h]}, v{OWN[p][h]}")
    qmark(3)
    a("s_nop 4")
    OUT = lambda p, T: OH[p][T] if T <= 3 else OL[p][4]
    for T in range(5):
        if T <= 3:
            a(f"s_mov_b64 exec, {HI(T)}")
            for p in range(2):
                for r in range(4): a(f"v_mul_f32 v{OUT(p,T)+r}, v{OH[p][T]+r}, v{OWN[p][T]}")
        if T >= 1:
            a(f"s_mov_b64 exec, {LO(T)}")
            for p in range(2):
                for r in range(4): a(f"v_mul_f32 v{OUT(p,T)+r}, v{OL[p][T]+r}, v{OWN[p][T-1]}")
    a(f"s_mov_b64 exec, {ALL}")
    odd = a.label("QC_ODD"); done = a.label("QC_DONE")
    a("s_and_b32 s60, s55, 1"); a("s_cmp_eq_u32 s60, 1"); a(f"s_cbranch_scc1 {odd}")
    def fin(pairs, single, skap, shalf):
        for p in range(2):
            for (T0, kap) in pairs:
                d = OUT(p, T0)
                pack(d, d); pack(d + 2, OUT(p, T0 + 1))
                a(f"buffer_store_dwordx4 {vr(d)}, v7, s[24:27], s{36+kap} offen offset:{p*1024}{o.sc}")
            d = OUT(p, single); pack(d, d)
            a(f"buffer_store_dwordx2 {vr(d,2)}, v7, s[24:27], s{36+skap} offen offset:{p*1024+shalf*8}{o.sc}")
    fin([(0, 0), (2, 1)], 4, 2, 0)
    a(f"s_branch {done}")
    a(f"{odd}:")
    fin([(1, 1), (3, 2)], 0, 0, 1)
    a(f"{done}:")
    qmark(4)
    trace(a, o, 0, 35)
    if o.trace: a("s_waitcnt vmcnt(0)")
    trace(a, o, 0, 36)
    trace_dump(a, o, 0, 22, 0, 8)
    if o.stamps:
        a.stamp(2); a("s_waitcnt vmcnt(0)"); a.stamp(3)
        a.dump_stamps(4, 0, 22, vtid="v0", tmp=("v8", "v9", "v10", "v11"))
    a("s_endpgm")

def f32bits(x):
    import struct
    return struct.unpack("<I", struct.pack("<f", x))[0]

def qkv_loader(a, o):
    if o.prio: a(f"s_setprio {o.prio}")
    x_voffs(a, 16, 2)
    def wv(dst, s):
        a(f"s_lshl_b32 s60, s59, 8"); a(f"s_add_u32 s60, s60, {s*64}")
        a(f"v_add_u32 v2, s60, v1")
        a("v_mul_u32_u24 v3, 2185, v2"); a("v_lshrrev_b32 v3, 16, v3")
        a("v_mul_u32_u24 v4, 30, v3"); a("v_sub_u32 v4, v2, v4")
        a("v_mul_u32_u24 v5, 205, v4"); a("v_lshrrev_b32 v5, 11, v5")
        a("v_and_b32 v6, 0x13, v3"); a("v_and_b32 v7, 4, v3"); a("v_lshl_or_b32 v6, v7, 1, v6")
        a("v_bfe_u32 v7, v3, 3, 1"); a("v_lshl_or_b32 v6, v7, 2, v6")
        a("v_mul_u32_u24 v6, 3840, v6"); a("v_mul_u32_u24 v5, 1120, v5")
        a("v_lshl_add_u32 v6, v4, 4, v6"); a("v_add_u32 v6, v6, v5")
        a(f"v_add_u32 v{dst}, s61, v6")
    a("s_mul_i32 s61, s55, 160")
    for s in range(3): wv(10 + s, s)
    hl = a.label("QL_H"); hd = a.label("QL_HD")
    a("s_cmp_eq_u32 s59, 3"); a(f"s_cbranch_scc1 {hl}")
    wv(13, 3); a("v_mov_b32 v14, v13")
    a(f"s_branch {hd}")
    a(f"{hl}:")
    a("v_lshrrev_b32 v2, 3, v1"); a("v_lshlrev_b32 v2, 1, v2"); a("s_sub_u32 s60, s58, 16"); a("v_add_u32 v2, s60, v2")
    a("v_lshrrev_b32 v3, 4, v1"); a("v_and_b32 v4, 7, v1")
    for e in range(2):
        a(f"v_add_u32 v5, {e}, v2"); a("v_max_i32 v5, 0, v5"); a("v_mul_u32_u24 v5, 1280, v5")
        a(f"v_or_b32 v6, {4*e}, v3"); a("v_xor_b32 v6, v6, v4"); a(f"v_lshl_add_u32 v{13+e}, v6, 4, v5")
    a(f"{hd}:")
    a("s_waitcnt lgkmcnt(0)")
    srd(a, 24, 6, 0, 640 * 3840); srd(a, 28, 4, 0, 2048 * 1280)
    a("s_cmp_eq_u32 s59, 3")
    for k in range(4): a(f"s_cselect_b32 s{32+k}, s{28+k}, s{24+k}")
    a("s_lshl_b32 s45, s59, 12")
    a(f"s_add_u32 s46, s45, {QX}")
    a("s_add_u32 s43, s45, 3072"); a("s_add_u32 s44, s45, 18432")
    a("s_cmp_eq_u32 s59, 3"); a(f"s_cselect_b32 s43, {QH}, s43"); a(f"s_cselect_b32 s44, {QH+1024}, s44")
    a("s_mov_b32 s41, 0")
    def issue(fill=None):
        k = [0]
        def F():
            if fill: fill(k[0])
            k[0] += 1
        a("s_mul_i32 s36, s42, 245760"); a("s_add_u32 s37, s36, 122880"); a("s_lshl_b32 s38, s42, 7")
        a("s_cmp_eq_u32 s59, 3"); a("s_cselect_b32 s39, s38, s36"); a("s_cselect_b32 s40, s38, s37")
        a("s_add_u32 s49, s41, s46")
        for s in range(4):
            a(f"s_add_u32 m0, s49, {s*1024}"); a("s_nop 0")
            a(f"buffer_load_dwordx4 v{16+s}, s[28:31], s38 offen lds"); F()
        a("s_add_u32 s49, s41, s45")
        for s in range(3):
            a(f"s_add_u32 m0, s49, {s*1024}"); a("s_nop 0")
            a(f"buffer_load_dwordx4 v{10+s}, s[24:27], s36 offen lds"); F()
        a("s_add_u32 m0, s41, s43"); a("s_nop 0"); a("buffer_load_dwordx4 v13, s[32:35], s39 offen lds"); F()
        for s in range(3):
            a(f"s_add_u32 m0, s49, {s*1024+15360}"); a("s_nop 0")
            a(f"buffer_load_dwordx4 v{10+s}, s[24:27], s37 offen lds"); F()
        a("s_add_u32 m0, s41, s44"); a("s_nop 0"); a("buffer_load_dwordx4 v14, s[32:35], s40 offen lds"); F()
        adv_kd(a, 42); adv_stage(a, 41, QST)
    trace(a, o, 0, 30)
    if o.trace == 5:
        issue(lambda k: trace(a, o, 0, 44 + k) if k in (0, 3, 4, 7, 11) else None); issue(lambda k: trace(a, o, 0, 56 + k // 3) if k in (0, 3, 7) else None)
        trace(a, o, 0, 31)
        a("s_waitcnt vmcnt(12)"); trace(a, o, 0, 60); a("s_waitcnt vmcnt(0)"); trace(a, o, 0, 61)
    elif o.l0:
        issue(); trace(a, o, 0, 31); a("s_waitcnt vmcnt(0)"); trace(a, o, 0, 60); a("s_barrier"); issue(); issue()
    else:
        issue(); issue()
    if not o.l0: trace(a, o, 0, 31)
    if o.pipe:
        a(f"s_mov_b32 s48, {7 if o.l0 else 8}")
        a("QL_LOOP:")
        a("s_waitcnt vmcnt(12)")
        if o.trace: a("s_add_u32 s97, s48, 2")
        trace(a, o, 0, "s97")
        a("s_barrier")
        if o.trace: a("s_add_u32 s97, s48, 18")
        trace(a, o, 0, "s97")
        issue()
        a("s_sub_u32 s48, s48, 1"); a("s_cmp_lg_u32 s48, 0"); a("s_cbranch_scc1 QL_LOOP")
        a("s_waitcnt vmcnt(12)"); trace(a, o, 0, 2); a("s_barrier")
        a("s_waitcnt vmcnt(0)"); trace(a, o, 0, 1); a("s_barrier")
        trace(a, o, 0, 36)
        trace_dump(a, o, 0, 22, 0, 8)
        a("s_endpgm")
        return
    slot0(a, 20, 2)
    a("v_mul_u32_u24 v20, 480, v20"); a("v_and_b32 v2, 3, v1"); a("v_lshl_add_u32 v20, v2, 3, v20")
    a("s_and_b32 s60, s59, 1"); a("s_mul_i32 s60, s60, 160"); a("s_add_u32 s60, s60, 288"); a("v_add_u32 v21, s60, v20")
    a("s_lshl_b32 s60, s59, 5"); a("s_add_u32 s60, s60, 160"); a("v_add_u32 v20, s60, v20")
    x_read_addr(a, 22, 23, QH, 2, wave=False)
    for r in range(32, 48): a(f"v_mov_b32 v{r}, 0")
    a("s_mov_b32 s47, 0")
    def halo(iss=None):
        if o.nohalo == 1:
            if iss: iss()
            return
        lq = LQ(a)
        R = []
        for half in range(2):
            b = half * 16
            R.append((half, f"ds_read_b128 {vr(b+12,4,'a')}, v{26+half}"))
            for h in range(2):
                im = half * 15360 + h * 3840
                R.append((half, f"ds_read_b64_tr_b16 {vr(b+2*h,2,'a')}, v24 offset:{im}"))
                R.append((half, f"ds_read_b64_tr_b16 {vr(b+4+2*h,2,'a')}, v24 offset:{im+160}"))
                R.append((half, f"ds_read_b64_tr_b16 {vr(b+8+2*h,2,'a')}, v25 offset:{im}"))
        if o.hv & 1: R = [(hf, re.sub(r"a\[(\d+):(\d+)\]", lambda m: f"v[{int(m.group(1))+64}:{int(m.group(2))+64}]", ins)) for hf, ins in R]
        if o.hv & 4: R = [(hf, ins if i % 2 == 0 else "s_nop 0") for i, (hf, ins) in enumerate(R)]
        if o.hv & 8: R = [(hf, re.sub(r", v2\d", ", v28", re.sub(r"offset:\d+", "", ins))) for i, (hf, ins) in enumerate(R)]
        def mm(half):
            b = half * 16
            if not (o.hv & 2): lq.wait(half)
            else: lq.q = []
            if o.nohalo == 2: return
            mfma(a, 32, b, b + 12, 32); mfma(a, 36, b + 12, b + 4, 36); mfma(a, 40, b + 8, b + 12, 40); mfma(a, 44, b + 12, b + 8, 44)
        cnt = [1, 2, 1, 2, 1, 1, 2, 1, 2, 1, 0, 0]
        def fill(k):
            for _ in range(cnt[k]):
                hf, ins = R.pop(0); a(ins); lq.issue(hf)
            if k == 6: mm(0)
            if k == 9:
                adv_stage(a, 47, QST)
                a("v_add_u32 v24, s47, v20"); a("v_add_u32 v25, s47, v21"); a("v_add_u32 v26, s47, v22"); a("v_add_u32 v27, s47, v23")
            if k == 11: mm(1)
        if iss: iss(fill)
        else:
            for k in range(12):
                if k < 11: a(f"s_sleep 1")
                fill(k)
    a("v_mov_b32 v28, 0")
    a("v_mov_b32 v24, v20"); a("v_mov_b32 v25, v21"); a("v_mov_b32 v26, v22"); a("v_mov_b32 v27, v23")
    a("s_mov_b32 s48, 8")
    a("QL_LOOP:")
    a("s_waitcnt vmcnt(12)")
    if o.trace: a("s_add_u32 s97, s48, 2")
    trace(a, o, 0, "s97")
    a("s_barrier")
    if o.trace: a("s_add_u32 s97, s48, 18")
    if o.trace == 4: trace(a, o, 0, "s97")
    halo(issue)
    if o.trace != 4: trace(a, o, 0, "s97")
    a("s_sub_u32 s48, s48, 1"); a("s_cmp_lg_u32 s48, 0"); a("s_cbranch_scc1 QL_LOOP")
    a("s_waitcnt vmcnt(12)"); trace(a, o, 0, 2); a("s_barrier"); halo()
    a("s_waitcnt vmcnt(0)"); trace(a, o, 0, 1); a("s_barrier"); halo()
    if o.pipe: a("s_barrier")
    a("s_lshl_b32 s60, s59, 9"); a(f"s_add_u32 s60, s60, {EXB}")
    a("v_lshl_add_u32 v2, v1, 3, s60")
    a(f"v_lshlrev_b32 v3, 3, v1"); a(f"v_add_u32 v3, {EXB}, v3")
    a("s_nop 4")
    for k in range(4):
        b = 32 + 4 * k
        a(f"v_cvt_pk_bf16_f32 v{b}, v{b}, v{b+1}"); a(f"v_cvt_pk_bf16_f32 v{b+1}, v{b+2}, v{b+3}")
    for p in range(2):
        a(f"ds_write_b64 v2, v[32:33] offset:{p*5120}")
        a(f"ds_write_b64 v2, v[36:37] offset:{p*5120+2560}")
    l1 = a.label("QL_C"); l2 = a.label("QL_C")
    a("s_cmp_lg_u32 s59, 0"); a(f"s_cbranch_scc1 {l1}")
    for p in range(2): a(f"ds_write_b64 v3, v[40:41] offset:{p*5120+2048}")
    a(f"{l1}:")
    a("s_cmp_lg_u32 s59, 1"); a(f"s_cbranch_scc1 {l2}")
    for p in range(2): a(f"ds_write_b64 v3, v[44:45] offset:{p*5120+2560+2048}")
    a(f"{l2}:")
    a("s_waitcnt lgkmcnt(0)"); a("s_barrier")
    trace(a, o, 0, 36)
    trace_dump(a, o, 0, 22, 0, 8)
    a("s_endpgm")

def mlp_consumer(a, o):
    ACC = lambda p, T: 16 + (p * 12 + T) * 4
    a("s_waitcnt lgkmcnt(0)")
    srd(a, 28, 14, 0, 3072)
    a("v_lshrrev_b32 v9, 4, v1"); a("v_lshlrev_b32 v9, 3, v9"); a("s_mul_i32 s60, s55, 384")
    for T in range(12):
        a(f"buffer_load_dwordx2 {vr(ACC(1,T),2)}, v9, s[28:31], s60 offen offset:{T*32}")
    k1_prefetch(a, o, "M", True)
    slot0(a, 8, 9)
    a("v_bfe_u32 v9, v8, 1, 2")
    a("v_mul_u32_u24 v8, 384, v8"); a("v_and_b32 v10, 3, v1"); a("v_lshl_add_u32 v8, v10, 3, v8")
    for b in range(4):
        a(f"v_xor_b32 v10, {b}, v9"); a(f"v_lshl_add_u32 v{2+b}, v10, 5, v8")
    x_read_addr(a, 6, 7, MX, 9)
    srd(a, 24, 22, WS_A, 32 * 68 * 4096)
    a("s_lshl_b32 s36, s54, 1"); a("s_lshr_b32 s37, s59, 1"); a("s_add_u32 s36, s36, s37"); a("s_mul_i32 s36, s36, 68")
    a("s_mul_i32 s37, s55, 6"); a("s_add_u32 s37, s37, 20"); a("s_add_u32 s36, s36, s37"); a("s_lshl_b32 s36, s36, 12")
    a("s_and_b32 s37, s59, 1"); a("s_lshl_b32 s37, s37, 11"); a("s_add_u32 s36, s36, s37")
    for k in range(1, 6): a(f"s_add_u32 s{36+k}, s36, {4096*k}")
    for k in range(6): a(f"v_mov_b32 v{8+k}, v{2+k}")
    a("v_lshlrev_b32 v14, 4, v1")
    for T in range(12):
        s = ACC(1, T); d = ACC(0, T)
        a(f"v_lshlrev_b32 v{d}, 16, v{s}"); a(f"v_and_b32 v{d+1}, 0xffff0000, v{s}")
        a(f"v_lshlrev_b32 v{d+2}, 16, v{s+1}"); a(f"v_and_b32 v{d+3}, 0xffff0000, v{s+1}")
        for r in range(4): a(f"v_mov_b32 v{s+r}, v{d+r}")
    a("s_mov_b32 s47, 0"); a("s_mov_b32 s48, 10")
    if True:
        a("MC_LOOP:")
        trace(a, o, 0, "s48")
        a("s_barrier")
        if o.trace: a("s_add_u32 s97, s48, 16")
        trace(a, o, 0, "s97")
        if not o.nocomp: gemm_stage(a, 12, lambda half, h, T: (8 + (T & 3), half * 12288 + h * 3072 + (T >> 2) * 128), [12, 13], ACC, lambda T: True)
        adv_stage(a, 47, MST)
        for k in range(6): a(f"v_add_u32 v{8+k}, s47, v{2+k}")
        a("s_sub_u32 s48, s48, 1"); a("s_cmp_lg_u32 s48, 0"); a("s_cbranch_scc1 MC_LOOP")
    if o.stamps: a.stamp(1)
    trace(a, o, 0, 32)
    c1 = -2.0 * math.sqrt(2.0 / math.pi) * math.log2(math.e)
    c2 = c1 * 0.044715
    a(f"s_mov_b32 s60, {hex(f32bits(c1))}"); a(f"s_mov_b32 s61, {hex(f32bits(c2))}")
    a("v_mov_b32 v15, s60")
    a("s_nop 4")
    TMP = 112
    for p in range(2):
        for kp in range(6):
            z = [ACC(p, 2 * kp) + r for r in range(8)]
            t = [TMP + ((p * 6 + kp) % 2) * 8 + r for r in range(8)]
            for r in range(8): a(f"v_mul_f32 v{t[r]}, v{z[r]}, v{z[r]}")
            for r in range(8): a(f"v_fma_f32 v{t[r]}, v{t[r]}, s61, v15")
            for r in range(8): a(f"v_mul_f32 v{t[r]}, v{t[r]}, v{z[r]}")
            for r in range(8): a(f"v_exp_f32 v{t[r]}, v{t[r]}")
            for r in range(8): a(f"v_add_f32 v{t[r]}, 1.0, v{t[r]}")
            for r in range(8): a(f"v_rcp_f32 v{t[r]}, v{t[r]}")
            for r in range(8): a(f"v_mul_f32 v{z[r]}, v{z[r]}, v{t[r]}")
            for k in range(4): a(f"v_cvt_pk_bf16_f32 v{z[k]}, v{z[2*k]}, v{z[2*k+1]}")
            a(f"buffer_store_dwordx4 {vr(z[0])}, v14, s[24:27], s{36+kp} offen offset:{p*1024}{o.sc}")
    if o.dry: a("s_cbranch_execz MC_REAL")
    if o.pfb:
        srd(a, 80, 22, WS_B, 8 * 68 * 5120)
        a("s_and_b32 s60, s50, 1"); a("s_mul_i32 s60, s60, 1392640"); a("s_and_b32 s61, s51, 15"); a("s_lshl_b32 s61, s61, 2"); a("s_add_u32 s61, s61, s59")
        a("s_mul_i32 s61, s61, 21760"); a("s_add_u32 s60, s60, s61"); a("v_lshlrev_b32 v201, 6, v1"); a("v_add_u32 v201, s60, v201")
        if o.pfb > 1: a(f"s_sleep {o.pfb}")
        for k in range(6):
            a("buffer_load_dword v200, v201, s[80:83], 0 offen"); a("v_add_u32 v201, 4096, v201")
    trace(a, o, 0, 35)
    if o.trace: a("s_waitcnt vmcnt(0)")
    trace(a, o, 0, 36)
    trace_dump(a, o, 0, 22, 0, 8)
    if o.stamps:
        a.stamp(2); a("s_waitcnt vmcnt(0)"); a.stamp(3)
        a.dump_stamps(4, 0, 22, vtid="v0", tmp=("v8", "v9", "v10", "v11"))
    a("s_endpgm")

def mlp_consumer2(a, o):
    if not o.cwl: code_warm(a, o)
    ACC = lambda p, T: 16 + (p * 6 + T) * 4
    a("s_and_b32 s57, s59, 1")
    a("s_waitcnt lgkmcnt(0)")
    if o.cwl: code_warm(a, o)
    srd(a, 28, 14, 0, 3072)
    a("v_lshrrev_b32 v9, 4, v1"); a("v_lshlrev_b32 v9, 3, v9"); a("s_mul_i32 s60, s55, 384"); a("s_mul_i32 s61, s57, 192"); a("s_add_u32 s60, s60, s61")
    B1 = (lambda T: 128 + 2 * T) if o.dry else (lambda T: ACC(1, T))
    for T in range(6):
        a(f"buffer_load_dwordx2 {vr(B1(T),2)}, v9, s[28:31], s60 offen offset:{T*32}")
    if o.pf1: k1_prefetch(a, o, "M", True)
    slot0(a, 8, 9)
    a("v_bfe_u32 v9, v8, 1, 2")
    a("v_mul_u32_u24 v8, 384, v8"); a("v_and_b32 v10, 3, v1"); a("v_lshl_add_u32 v8, v10, 3, v8")
    a("s_lshl_b32 s60, s57, 1"); a("v_xor_b32 v9, s60, v9"); a("s_lshl_b32 s60, s57, 7"); a("v_add_u32 v8, s60, v8")
    for b in range(4):
        if b == 2: a("v_add_u32 v8, s60, v8")
        a(f"v_xor_b32 v10, {b}, v9"); a(f"v_lshl_add_u32 v{2+b}, v10, 5, v8")
    x_read_addr(a, 6, 7, MX, 9, wave=False)
    a("s_lshr_b32 s60, s59, 1"); a("s_lshl_b32 s60, s60, 13"); a("v_add_u32 v6, s60, v6"); a("v_add_u32 v7, s60, v7")
    srd(a, 24, 22, WS_A, 0 if o.dry else 32 * 68 * 4096)
    a("s_lshl_b32 s36, s54, 1"); a("s_lshr_b32 s37, s59, 1"); a("s_add_u32 s36, s36, s37"); a("s_mul_i32 s36, s36, 68")
    a("s_mul_i32 s37, s55, 6"); a("s_add_u32 s37, s37, 20"); a("s_add_u32 s36, s36, s37"); a("s_mul_i32 s37, s57, 3"); a("s_add_u32 s36, s36, s37")
    a("s_lshl_b32 s36, s36, 12")
    for k in range(1, 3): a(f"s_add_u32 s{36+k}, s36, {4096*k}")
    for k in range(6): a(f"v_mov_b32 v{8+k}, v{2+k}")
    a("v_lshlrev_b32 v14, 4, v1")
    if o.dry:
        a("s_mov_b32 s47, 0"); a("s_mov_b32 s48, 1"); a("s_mov_b64 exec, 0"); a("s_branch MC_LOOP")
        a("MC_REAL:")
        a("s_mov_b64 exec, -1"); a(f"s_mov_b32 s26, {32*68*4096}")
        a("s_waitcnt lgkmcnt(0)"); a("s_nop 7"); a("s_nop 7")
    if not o.pf1: a("s_waitcnt vmcnt(0)")
    for T in range(6):
        s = B1(T); d = ACC(0, T)
        a(f"v_lshlrev_b32 v{d}, 16, v{s}"); a(f"v_and_b32 v{d+1}, 0xffff0000, v{s}")
        a(f"v_lshlrev_b32 v{d+2}, 16, v{s+1}"); a(f"v_and_b32 v{d+3}, 0xffff0000, v{s+1}")
        for p in range(1, 4):
            for r in range(4): a(f"v_mov_b32 v{ACC(p,T)+r}, v{d+r}")
    a("s_mov_b32 s47, 0")
    advm = lambda: adv_list(47, MST) + [f"v_add_u32 v{8+k}, s47, v{2+k}" for k in range(6)]
    gemm_loop(a, o, "MC", 6, 4, lambda half, h, T: (8 + (T & 3), half * 12288 + h * 3072 + (T >> 2) * 128), [12, 13], ACC, lambda T: True, advm, 4, o.ml, 1)
    if o.stamps: a.stamp(1)
    trace(a, o, 0, 32)
    c1 = -2.0 * math.sqrt(2.0 / math.pi) * math.log2(math.e)
    c2 = c1 * 0.044715
    a(f"s_mov_b32 s60, {hex(f32bits(c1))}"); a(f"s_mov_b32 s61, {hex(f32bits(c2))}")
    a("v_mov_b32 v15, s60")
    a("s_nop 4")
    TMP = 112
    if o.dry:
        a("s_cbranch_execnz MC_Q0")
        for w in range(1, 4): a(f"s_cmp_eq_u32 s59, {w}"); a(f"s_cbranch_scc1 MC_Q{w}")
    for p in range(4):
        if o.dry:
            if p: a("s_cbranch_execz MC_REAL")
            a(f"MC_Q{p}:")
        for kp in range(3):
            z = [ACC(p, 2 * kp) + r for r in range(8)]
            t = [TMP + ((p * 3 + kp) % 2) * 8 + r for r in range(8)]
            for r in range(8): a(f"v_mul_f32 v{t[r]}, v{z[r]}, v{z[r]}")
            for r in range(8): a(f"v_fma_f32 v{t[r]}, v{t[r]}, s61, v15")
            for r in range(8): a(f"v_mul_f32 v{t[r]}, v{t[r]}, v{z[r]}")
            for r in range(8): a(f"v_exp_f32 v{t[r]}, v{t[r]}")
            for r in range(8): a(f"v_add_f32 v{t[r]}, 1.0, v{t[r]}")
            for r in range(8): a(f"v_rcp_f32 v{t[r]}, v{t[r]}")
            for r in range(8): a(f"v_mul_f32 v{z[r]}, v{z[r]}, v{t[r]}")
            for k in range(4): a(f"v_cvt_pk_bf16_f32 v{z[k]}, v{z[2*k]}, v{z[2*k+1]}")
            a(f"buffer_store_dwordx4 {vr(z[0])}, v14, s[24:27], s{36+kp} offen offset:{p*1024}{o.sc}")
    if o.dry: a("s_cbranch_execz MC_REAL")
    if o.pfb:
        srd(a, 80, 22, WS_B, 8 * 68 * 5120)
        a("s_and_b32 s60, s50, 1"); a("s_mul_i32 s60, s60, 1392640"); a("s_and_b32 s61, s51, 15"); a("s_lshl_b32 s61, s61, 2"); a("s_add_u32 s61, s61, s59")
        a("s_mul_i32 s61, s61, 21760"); a("s_add_u32 s60, s60, s61"); a("v_lshlrev_b32 v201, 6, v1"); a("v_add_u32 v201, s60, v201")
        if o.pfb > 1: a(f"s_sleep {o.pfb}")
        for k in range(6):
            a("buffer_load_dword v200, v201, s[80:83], 0 offen"); a("v_add_u32 v201, 4096, v201")
    trace(a, o, 0, 35)
    if o.trace: a("s_waitcnt vmcnt(0)")
    trace(a, o, 0, 36)
    trace_dump(a, o, 0, 22, 0, 8)
    if o.stamps:
        a.stamp(2); a("s_waitcnt vmcnt(0)"); a.stamp(3)
        a.dump_stamps(4, 0, 22, vtid="v0", tmp=("v8", "v9", "v10", "v11"))
    a("s_waitcnt lgkmcnt(0)")
    a("s_endpgm")

def mlp_loader(a, o):
    if o.prio: a(f"s_setprio {o.prio}")
    x_voffs(a, 16, 2)
    a("s_mul_i32 s61, s55, 384"); a("s_mul_i32 s60, s59, 49152"); a("s_add_u32 s61, s61, s60")
    for b in range(3):
        a(f"v_add_u32 v2, {64*b}, v1")
        a("v_mul_u32_u24 v3, 2731, v2"); a("v_lshrrev_b32 v3, 16, v3")
        a("v_mul_u32_u24 v4, 24, v3"); a("v_sub_u32 v4, v2, v4")
        a("v_and_b32 v5, 6, v3"); a("v_xor_b32 v4, v4, v5")
        a("v_and_b32 v6, 3, v3"); a("v_and_b32 v7, 4, v3"); a("v_lshl_or_b32 v6, v7, 1, v6")
        a("v_mul_u32_u24 v6, 3072, v6"); a("v_lshl_add_u32 v6, v4, 4, v6")
        a(f"v_add_u32 v{10+b}, s61, v6")
    a("v_lshlrev_b32 v9, 4, v1")
    a("s_waitcnt lgkmcnt(0)")
    srd(a, 24, 12, 0, 640 * 3072); srd(a, 28, 4, 0, 2048 * 1280); srd(a, 32, 20, 0, 1280)
    a("s_mul_i32 s45, s59, 6144"); a("s_lshl_b32 s46, s59, 12"); a(f"s_add_u32 s46, s46, {MX}")
    a("s_mov_b32 s41, 0"); a("s_mov_b32 s43, s42")
    a("s_and_b32 s60, s59, 1"); a("s_lshl_b32 s60, s60, 10"); a("v_add_u32 v8, s60, v9"); a("v_min_u32 v8, 1264, v8")
    a(f"s_add_u32 m0, s60, {MGATE}"); a("s_nop 0")
    a("buffer_load_dwordx4 v8, s[32:35], 0 offen lds")
    def issue(fill=None):
        k = [0]
        def F():
            if fill: fill(k[0])
            k[0] += 1
        a("s_mul_i32 s36, s42, 196608"); a("s_add_u32 s37, s36, 12288"); a("s_lshl_b32 s38, s42, 7")
        a("s_add_u32 s49, s41, s46")
        for s in range(4):
            a(f"s_add_u32 m0, s49, {s*1024}"); a("s_nop 0")
            a(f"buffer_load_dwordx4 v{16+s}, s[28:31], s38 offen lds"); F()
        a("s_add_u32 s49, s41, s45")
        for e in range(2):
            for b in range(3):
                a(f"s_add_u32 m0, s49, {(3*e+b)*1024}"); a("s_nop 0")
                a(f"buffer_load_dwordx4 v{10+b}, s[24:27], s{36+e} offen lds"); F()
        adv_kd(a, 42); adv_stage(a, 41, MST)
    if o.mld: a(f"s_sleep {o.mld}")
    trace(a, o, 0, 30)
    issue()
    if not o.l0: issue()
    trace(a, o, 0, 31)
    x_read_addr(a, 22, 23, MX, 2)
    a("s_and_b32 s60, s55, 1"); a("s_lshl_b32 s60, s60, 11"); a("v_add_u32 v22, s60, v22"); a("v_add_u32 v23, s60, v23")
    a("v_lshrrev_b32 v20, 4, v1"); a("v_lshlrev_b32 v20, 4, v20"); a(f"v_add_u32 v20, {MGATE}, v20")
    for r in range(32, 40): a(f"v_mov_b32 v{r}, 0")
    a("s_mov_b32 s47, 0")
    a("s_lshr_b32 s80, s55, 1")
    def gate_adv():
        a("s_lshl_b32 s60, s43, 7")
        a("v_add_u32 v24, s60, v20"); a("v_add_u32 v25, s47, v22"); a("v_add_u32 v26, s47, v23")
    gate_adv()
    def gate(iss=None):
        if o.nohalo == 1:
            if iss: iss()
            return
        def fill(k):
            if k not in (2, 7): return
            sk = a.label("GSK")
            a("s_cmp_lg_u32 s80, s59"); a(f"s_cbranch_scc1 {sk}")
            if k == 2:
                for half in range(2):
                    a(f"ds_read_b128 {vr(half*8,4,'a')}, v24 offset:{half*64}")
                    a(f"ds_read_b128 {vr(half*8+4,4,'a')}, v{25+half}")
                adv_stage(a, 47, MST); adv_kd(a, 43); gate_adv()
            if k == 7:
                a("s_waitcnt lgkmcnt(0)")
                for half in range(2): mfma(a, 32 + 4 * half, half * 8, half * 8 + 4, 32 + 4 * half)
            a(f"{sk}:")
        if iss: iss(fill)
        else:
            a("s_sleep 2"); fill(2); fill(7)
    for s in range(5):
        a(f"v_add_u32 v2, {64*s}, v1")
        a("v_mul_u32_u24 v3, 6554, v2"); a("v_lshrrev_b32 v3, 16, v3")
        a("v_mul_u32_u24 v4, 10, v3"); a("v_sub_u32 v4, v2, v4")
        a("v_mul_u32_u24 v3, 1280, v3"); a(f"v_lshl_add_u32 v{40+s}, v4, 4, v3")
    a("s_mul_i32 s44, s59, 5120"); a(f"s_add_u32 s44, s44, {MSIDE}")
    a("v_lshrrev_b32 v2, 2, v1"); a("v_mul_u32_u24 v2, 160, v2"); a("v_add_u32 v2, s44, v2"); a("v_and_b32 v3, 3, v1")
    a("v_lshl_add_u32 v45, v3, 4, v2"); a("v_lshl_add_u32 v46, v3, 3, v2")
    a("s_lshl_b32 s62, s54, 3"); a("s_add_u32 s62, s62, s55")
    srd(a, 72, 22, WS_B, 8 * 68 * 5120)
    def side_issue():
        a("s_lshr_b32 s63, s62, 1"); a("s_and_b32 s64, s62, 1"); a("s_lshl_b32 s64, s64, 2"); a("s_add_u32 s64, s64, s59")
        a("s_cmp_lt_u32 s63, 20")
        a("s_cselect_b32 s68, s8, s16"); a("s_cselect_b32 s69, s9, s17"); a(f"s_mov_b32 s70, {1536*1280}"); a(f"s_cselect_b32 s70, {640*1280}, s70")
        a("s_cselect_b32 s65, 0, 20"); a("s_and_b32 s69, s69, 0xffff"); a("s_mov_b32 s71, 0x00020000")
        a("s_sub_u32 s65, s63, s65"); a("s_mul_i32 s65, s65, 40960"); a("s_mul_i32 s66, s64, 160"); a("s_add_u32 s65, s65, s66")
        for s in range(5):
            a(f"s_add_u32 m0, s44, {s*1024}"); a("s_nop 0")
            a(f"buffer_load_dwordx4 v{40+s}, s[68:71], s65 offen lds")
        a("s_mul_i32 s66, s64, 68"); a("s_add_u32 s66, s66, s63"); a("s_mul_i32 s66, s66, 5120"); a("s_add_u32 s67, s66, 4096")
    def side_finish():
        for t in range(5):
            for e in range(2):
                if t < 4: a(f"ds_read_b64_tr_b16 {vr(48+4*t+2*e,2)}, v45 offset:{e*2560+(t>>1)*64+(t&1)*8}")
                else: a(f"ds_read_b64_tr_b16 {vr(48+4*t+2*e,2)}, v46 offset:{e*2560+128}")
        a("s_waitcnt lgkmcnt(0)")
        for t in range(4): a(f"buffer_store_dwordx4 {vr(48+4*t)}, v9, s[72:75], s66 offen offset:{t*1024}{o.sc}")
        a(f"buffer_store_dwordx4 {vr(64)}, v9, s[72:75], s67 offen{o.sc}")
    if o.l0:
        a("s_waitcnt vmcnt(0)"); trace(a, o, 0, 60); a("s_barrier"); issue(); gate(issue)
    a(f"s_mov_b32 s48, {7 if o.l0 else 8}")
    a("ML_LOOP:")
    a("s_waitcnt vmcnt(10)")
    if o.trace: a("s_add_u32 s97, s48, 2")
    trace(a, o, 0, "s97")
    a("s_barrier")
    if o.trace: a("s_add_u32 s97, s48, 18")
    if o.trace == 4: trace(a, o, 0, "s97")
    gate(issue)
    if o.trace != 4: trace(a, o, 0, "s97")
    a("s_sub_u32 s48, s48, 1"); a("s_cmp_lg_u32 s48, 0"); a("s_cbranch_scc1 ML_LOOP")
    side_issue()
    a("s_waitcnt vmcnt(15)"); trace(a, o, 0, 2); a("s_barrier"); gate()
    a("s_waitcnt vmcnt(5)"); trace(a, o, 0, 1); a("s_barrier"); gate()
    if o.pipe: a("s_barrier")
    lg = a.label("ML_NOG")
    a("s_cmp_lg_u32 s80, s59"); a(f"s_cbranch_scc1 {lg}")
    srd(a, 76, 22, WS_G, 8192)
    a("s_lshl_b32 s60, s59, 5"); a("s_add_u32 s60, s60, s58"); a("s_and_b32 s61, s55, 1"); a("s_add_u32 s60, s60, s61"); a("s_lshl_b32 s60, s60, 2")
    a("v_lshlrev_b32 v2, 3, v1")
    a("s_nop 4")
    a("v_add_f32 v32, v32, v36"); a("v_mul_f32 v32, 0xbfb8aa3b, v32")
    a("v_exp_f32 v32, v32"); a("s_nop 0")
    a("v_add_f32 v32, 1.0, v32")
    a("v_rcp_f32 v32, v32")
    a("s_mov_b64 exec, 0xffff"); a("s_nop 0")
    a(f"buffer_store_dword v32, v2, s[76:79], s60 offen{o.sc}")
    a("s_mov_b64 exec, -1")
    a(f"{lg}:")
    a("s_waitcnt vmcnt(0)")
    trace(a, o, 0, 33)
    side_finish()
    if o.trace: a("s_waitcnt vmcnt(0)")
    trace(a, o, 0, 36)
    trace_dump(a, o, 0, 22, 0, 8)
    a("s_cmp_ge_u32 s62, 8"); a("s_cbranch_scc1 K1_EXIT")
    a("s_add_u32 s62, s62, 128")
    side_issue()
    a("s_waitcnt vmcnt(0)")
    side_finish()
    a("s_endpgm")

def k2(a, o):
    a.begin("gm2_kernel", 256, 256, 102400 if o.bal else 81920, vgpr=148 if o.bal else 128, agpr=144)
    a("s_cmp_ge_u32 s2, 256"); a("s_cbranch_scc1 K2_EXIT")
    if o.stamps: a.stamp(0)
    a("s_load_dwordx2 s[4:5], s[0:1], 88")
    a("s_load_dwordx2 s[6:7], s[0:1], 56")
    a("s_load_dwordx2 s[8:9], s[0:1], 72")
    a("v_and_b32 v1, 63, v0"); a("v_lshrrev_b32 v2, 6, v0")
    a("s_and_b32 s50, s2, 7"); a("s_lshr_b32 s51, s2, 3")
    a("v_readfirstlane_b32 s3, v2")
    if o.k2map == 0:
        a("s_lshl_b32 s52, s50, 2"); a("s_lshr_b32 s53, s51, 3"); a("s_add_u32 s52, s52, s53"); a("s_and_b32 s53, s51, 7")
    else:
        a("s_lshr_b32 s52, s50, 1"); a("s_lshl_b32 s52, s52, 3"); a("s_lshr_b32 s53, s51, 2"); a("s_add_u32 s52, s52, s53")
        a("s_and_b32 s53, s50, 1"); a("s_lshl_b32 s53, s53, 2"); a("s_and_b32 s54, s51, 3"); a("s_add_u32 s53, s53, s54")
    if o.bal:
        a("s_mul_i32 s54, s3, 17"); a("s_mov_b32 s48, 3"); a("s_cmp_eq_u32 s3, 1"); a("s_cselect_b32 s49, 3, 0")
    else:
        a("s_lshl_b32 s54, s3, 4"); a("s_add_u32 s54, s54, 4"); a("s_cmp_eq_u32 s3, 0"); a("s_cselect_b32 s54, 0, s54")
        a("s_cselect_b32 s48, 4, 3")
    a("s_mul_i32 s36, s52, 68"); a("s_add_u32 s36, s36, s54"); a("s_lshl_b32 s36, s36, 12")
    a("s_mul_i32 s37, s53, 68"); a("s_add_u32 s37, s37, s54"); a("s_mul_i32 s37, s37, 5120")
    a("v_lshlrev_b32 v2, 4, v1"); a("v_add_u32 v3, 4096, v2")
    a("s_waitcnt lgkmcnt(0)")
    srd(a, 24, 4, WS_A, 32 * 68 * 4096); srd(a, 28, 4, WS_B, 8 * 68 * 5120)
    BUF = lambda n: (n % 4) * 36
    def loads(n):
        b = BUF(n)
        L = []
        for t in range(5):
            L.append(f"buffer_load_dwordx4 {vr(b+16+4*t,4,'a')}, v{2 if t<4 else 3}, s[28:31], s37 offen offset:{(t%4)*1024}{o.l2f}")
        for i in range(4):
            L.append(f"buffer_load_dwordx4 {vr(b+4*i,4,'a')}, v2, s[24:27], s36 offen offset:{i*1024}{o.l2f}")
        order = [L[5], L[0], L[6], L[1], L[7], L[2], L[8], L[3], L[4]]
        return order
    def adv(): a("s_add_u32 s36, s36, 4096"); a("s_add_u32 s37, s37, 5120")
    for n in range(3):
        for s in loads(n): a(s)
        adv()
    srd(a, 32, 6, 0, 1280); srd(a, 40, 4, WS_G, 8192); srd(a, 44, 8, 0, 2048 * 1280)
    ACC = lambda i, t: 8 + (i * 5 + t) * 4
    for r in range(8, 88): a(f"v_mov_b32 v{r}, 0")
    def step(n, ld, wait):
        a(f"s_waitcnt vmcnt({wait})")
        b = BUF(n)
        L = loads(n + 3) if ld else []
        k = 0
        for t in range(5):
            for i in range(4):
                mfma(a, ACC(i, t), b + 16 + 4 * t, b + 4 * i, ACC(i, t))
                if k % 2 == 1 and L: a(L.pop(0))
                k += 1
        for s in L: a(s)
        if ld: adv()
    a("K2_LOOP:")
    for n in range(4):
        step(n, True, 18)
        if o.bal and n == 2:
            a("s_cmp_lg_u32 s48, s49"); a("s_cbranch_scc1 K2_NOFL")
            a("v_add_u32 v4, 81920, v2"); a("s_nop 7"); a("s_nop 7")
            for i in range(4):
                for t in range(5): a(f"ds_write_b128 v4, {vr(ACC(i,t))} offset:{(i*5+t)*1024}")
            a("s_waitcnt lgkmcnt(0)")
            for r in range(8, 88): a(f"v_mov_b32 v{r}, 0")
            a("s_nop 1")
            a("K2_NOFL:")
    a("s_sub_u32 s48, s48, 1"); a("s_cmp_lg_u32 s48, 0"); a("s_cbranch_scc1 K2_LOOP")
    step(0, True, 18)
    if o.bal: step(1, True, 18)
    a("v_and_b32 v4, 15, v1"); a("v_lshrrev_b32 v5, 4, v1")
    a("s_lshl_b32 s55, s52, 6"); a("s_lshr_b32 s56, s3, 1"); a("s_lshl_b32 s56, s56, 5"); a("s_add_u32 s55, s55, s56")
    a("s_and_b32 s56, s3, 1"); a("s_add_u32 s55, s55, s56")
    a("v_lshlrev_b32 v6, 3, v4"); a("s_lshl_b32 s56, s55, 2")
    a("buffer_load_dword v88, v6, s[40:43], s56 offen")
    a("v_lshlrev_b32 v6, 4, v5"); a("v_lshlrev_b32 v7, 3, v5"); a("s_mul_i32 s57, s53, 160")
    a("buffer_load_dwordx4 v[92:95], v6, s[32:35], s57 offen")
    a("buffer_load_dwordx4 v[96:99], v6, s[32:35], s57 offen offset:64")
    a("buffer_load_dwordx2 v[100:101], v7, s[32:35], s57 offen offset:128")
    if o.bal: step(2, False, 22); step(3, False, 13); step(0, False, 4)
    else: step(1, False, 22); step(2, False, 13); step(3, False, 4)
    if o.stamps: a.stamp(1)
    a("v_mul_u32_u24 v4, 2560, v4"); a("v_add_u32 v6, v4, v6"); a("v_add_u32 v7, v4, v7")
    a("s_mul_i32 s56, s55, 1280"); a("s_add_u32 s56, s56, s57")
    a("s_mul_i32 s58, s3, 20480"); a("v_add_u32 v4, s58, v2")
    a("s_mul_i32 s58, s3, 5120"); a("v_add_u32 v5, s58, v2")
    a("s_nop 4")
    for i in range(4):
        for t in range(5): a(f"ds_write_b128 v4, {vr(ACC(i,t))} offset:{(i*5+t)*1024}")
    a("s_waitcnt lgkmcnt(0)"); a("s_barrier")
    P = lambda w, t: 8 + (w * 5 + t) * 4
    for w in range(3):
        for t in range(5): a(f"ds_read_b128 {vr(P(w,t))}, v5 offset:{w*20480+t*1024}")
    a("v_add_u32 v5, 61440, v5")
    a("s_waitcnt vmcnt(0)")
    for k in range(10):
        s = 92 + k
        a(f"v_lshlrev_b32 v{104+2*k}, 16, v{s}"); a(f"v_and_b32 v{105+2*k}, 0xffff0000, v{s}")
    a("s_waitcnt lgkmcnt(5)")
    for t in range(5): a(f"ds_read_b128 {vr(P(3,t))}, v5 offset:{t*1024}")
    if o.bal:
        for t in range(5): a(f"ds_read_b128 {vr(128+4*t)}, v5 offset:{20480+t*1024}")
    a("v_sub_f32 v89, 1.0, v88")
    B2 = lambda t, r: 104 + (t * 4 + r)
    for t in range(5):
        for r in range(4): a(f"v_add_f32 v{B2(t,r)}, v{B2(t,r)}, v{P(1,t)+r}")
    a(f"s_waitcnt lgkmcnt({10 if o.bal else 5})")
    for t in range(5):
        for r in range(4): a(f"v_add_f32 v{B2(t,r)}, v{B2(t,r)}, v{P(2,t)+r}")
    if not o.bal:
        for t in range(5):
            for r in range(4): a(f"v_mul_f32 v{P(0,t)+r}, v88, v{P(0,t)+r}")
    a(f"s_waitcnt lgkmcnt({5 if o.bal else 0})")
    for t in range(5):
        for r in range(4): a(f"v_add_f32 v{B2(t,r)}, v{B2(t,r)}, v{P(3,t)+r}")
    if o.bal:
        a("s_waitcnt lgkmcnt(0)")
        for t in range(5):
            for r in range(4): a(f"v_add_f32 v{P(0,t)+r}, v{P(0,t)+r}, v{128+4*t+r}")
        for t in range(5):
            for r in range(4): a(f"v_mul_f32 v{P(0,t)+r}, v88, v{P(0,t)+r}")
    for t in range(5):
        for r in range(4): a(f"v_fma_f32 v{B2(t,r)}, v89, v{B2(t,r)}, v{P(0,t)+r}")
    for k in range(10): a(f"v_cvt_pk_bf16_f32 v{8+k}, v{104+2*k}, v{105+2*k}")
    a(f"buffer_store_dwordx4 v[8:11], v6, s[44:47], s56 offen{o.osc}")
    a(f"buffer_store_dwordx4 v[12:15], v6, s[44:47], s56 offen offset:64{o.osc}")
    a(f"buffer_store_dwordx2 v[16:17], v7, s[44:47], s56 offen offset:128{o.osc}")
    if o.stamps:
        a.stamp(2); a("s_waitcnt vmcnt(0)"); a.stamp(3)
        a.dump_stamps(4, 1, 4, vtid="v0", tmp=("v20", "v21", "v22", "v23"))
    a("K2_EXIT:"); a("s_endpgm")

def k2v2(a, o):
    NB = o.nb
    a.begin("gm2_kernel", 256, 256, 147456 if o.k2dma else 81920, vgpr=128, agpr=36 * NB)
    a("s_cmp_ge_u32 s2, 256"); a("s_cbranch_scc1 K2_EXIT")
    if o.stamps: a.stamp(0)
    a("s_load_dwordx2 s[4:5], s[0:1], 88")
    a("s_load_dwordx2 s[6:7], s[0:1], 56")
    a("s_load_dwordx2 s[8:9], s[0:1], 72")
    a("v_and_b32 v1, 63, v0"); a("v_lshrrev_b32 v2, 6, v0")
    a("s_and_b32 s50, s2, 7"); a("s_lshr_b32 s51, s2, 3")
    a("v_readfirstlane_b32 s3, v2")
    a("s_lshr_b32 s52, s50, 1"); a("s_lshl_b32 s52, s52, 3"); a("s_lshr_b32 s55, s51, 2")
    a("s_and_b32 s53, s50, 1"); a("s_lshl_b32 s53, s53, 2"); a("s_and_b32 s54, s51, 3")
    if o.pf2:
        a("s_lshr_b32 s60, s51, 3"); a("s_mul_i32 s60, s60, 17")
        a("s_and_b32 s61, s51, 7"); a("s_add_u32 s61, s61, s52"); a("s_mul_i32 s61, s61, 68"); a("s_add_u32 s61, s61, s60"); a("s_lshl_b32 s61, s61, 12")
        a("s_bfe_u32 s62, s51, 0x20001"); a("s_add_u32 s62, s62, s53"); a("s_mul_i32 s62, s62, 68"); a("s_add_u32 s62, s62, s60"); a("s_mul_i32 s62, s62, 5120")
        a("s_and_b32 s63, s51, 1"); a("s_mul_i32 s63, s63, 2560"); a("s_add_u32 s62, s62, s63"); a(f"s_add_u32 s62, s62, {WS_B - 4096}")
        a("v_lshlrev_b32 v4, 7, v1"); a("v_cmp_gt_u32 vcc, 32, v1")
        a("v_mov_b32 v5, s62"); a("v_mov_b32 v6, s61"); a("v_cndmask_b32 v5, v5, v6, vcc"); a("v_add_u32 v4, v4, v5")
        a("v_mov_b32 v5, 5120"); a("v_mov_b32 v6, 4096"); a("v_cndmask_b32 v5, v5, v6, vcc")
        a("v_mul_u32_u24 v6, s3, v5"); a("v_add_u32 v4, v4, v6"); a("v_lshlrev_b32 v5, 2, v5")
    a("s_add_u32 s52, s52, s55"); a("s_add_u32 s53, s53, s54")
    a("s_mul_i32 s56, s3, 17")
    a("s_mul_i32 s36, s52, 68"); a("s_add_u32 s36, s36, s56"); a("s_lshl_b32 s36, s36, 12")
    a("s_mul_i32 s37, s53, 68"); a("s_add_u32 s37, s37, s56"); a("s_mul_i32 s37, s37, 5120")
    if o.rot2:
        a("s_add_u32 s38, s36, 69632"); a("s_mov_b32 s39, s36"); a("s_mov_b32 s49, s37")
        a("s_lshl_b32 s57, s55, 1"); a("s_lshl_b32 s58, s54, 2"); a("s_add_u32 s57, s57, s58")
        if o.rot2 == 2: a("s_lshl_b32 s57, s54, 2")
        if o.rot2 == 3: a("s_lshl_b32 s57, s55, 1")
        a("s_sub_u32 s58, s57, 17"); a("s_cmp_ge_u32 s57, 17"); a("s_cselect_b32 s57, s58, s57")
        a("s_lshl_b32 s58, s57, 12"); a("s_add_u32 s36, s36, s58"); a("s_mul_i32 s58, s57, 5120"); a("s_add_u32 s37, s37, s58")
    a("v_lshlrev_b32 v2, 4, v1"); a("v_add_u32 v3, 4096, v2")
    a("s_waitcnt lgkmcnt(0)")
    srd(a, 24, 4, WS_A, 32 * 68 * 4096); srd(a, 28, 4, WS_B, 8 * 68 * 5120)
    npf = 0
    if o.pf2:
        srd(a, 64, 4, 0, WS_B + 8 * 68 * 5120)
        a("s_mov_b32 exec_hi, 0xfffff")
        for k in range(5):
            if k == 4:
                a("s_cmp_lg_u32 s3, 0"); a("s_cbranch_scc1 K2_PFD")
            a(f"buffer_load_dword v{7}, v4, s[64:67], 0 offen")
            if k < 4: a("v_add_u32 v4, v4, v5")
        a("K2_PFD:")
        a("s_mov_b64 exec, -1")
        if o.pfw: a(f"s_waitcnt vmcnt({o.pfw - 1})");
        if o.pfw: a("s_barrier")
    BUF = lambda n: (n % NB) * 36
    def loads(n):
        b = BUF(n)
        L = []
        for t in range(5):
            L.append(f"buffer_load_dwordx4 {vr(b+16+4*t,4,'a')}, v{2 if t<4 else 3}, s[28:31], s37 offen offset:{(t%4)*1024}{o.l2f}")
        for i in range(4):
            L.append(f"buffer_load_dwordx4 {vr(b+4*i,4,'a')}, v2, s[24:27], s36 offen offset:{i*1024}{o.l2f}")
        order = [L[5], L[0], L[6], L[1], L[7], L[2], L[8], L[3], L[4]]
        if o.k2dma:
            lb = (n % NB) * 9216
            order = []
            for i in range(4):
                order.append(f"s_add_u32 m0, s75, {lb}\nbuffer_load_dwordx4 v2, s[24:27], s36 offen offset:{i*1024} lds")
                order.append(f"s_add_u32 m0, s75, {lb+4096}\nbuffer_load_dwordx4 v2, s[28:31], s37 offen offset:{i*1024} lds")
            order.append(f"s_add_u32 m0, s75, {lb+8192}\nbuffer_load_dwordx4 v3, s[28:31], s37 offen lds")
        return order
    if o.k2dma: a(f"s_mul_i32 s75, s3, {NB*9216}")
    def adv():
        a("s_add_u32 s36, s36, 4096"); a("s_add_u32 s37, s37, 5120")
        if o.rot2:
            a("s_cmp_eq_u32 s36, s38"); a("s_cselect_b32 s36, s39, s36"); a("s_cselect_b32 s37, s49, s37")
    if o.k2rep:
        a("s_mov_b32 s70, s36"); a("s_mov_b32 s71, s37"); a("s_mov_b32 s72, s26"); a("s_mov_b32 s73, s30"); a("s_mov_b32 s74, 0")
        a("K2_REP:")
    for n in range(NB - 1):
        for s in loads(n): a(s)
        adv()
    srd(a, 32, 6, 0, 1280); srd(a, 40, 4, WS_G, 8192); srd(a, 44, 8, 0, 2048 * 1280)
    a("v_and_b32 v4, 15, v1"); a("v_lshrrev_b32 v5, 4, v1")
    a("s_lshl_b32 s55, s52, 6"); a("s_lshr_b32 s56, s3, 1"); a("s_lshl_b32 s56, s56, 5"); a("s_add_u32 s55, s55, s56")
    a("s_and_b32 s56, s3, 1"); a("s_add_u32 s55, s55, s56")
    a("v_lshlrev_b32 v6, 3, v4"); a("s_lshl_b32 s56, s55, 2")
    a("v_lshlrev_b32 v90, 4, v5"); a("v_lshlrev_b32 v91, 3, v5"); a("s_mul_i32 s57, s53, 160")
    ACC = lambda i, t: 8 + (i * 5 + t) * 4
    for r in range(8, 88): a(f"v_mov_b32 v{r}, 0")
    W = 9 * (NB - 2)
    def step(n, wait):
        a(f"s_waitcnt vmcnt({wait})")
        b = BUF(n)
        L = loads(n + NB - 1)
        k = 0
        for t in range(5):
            for i in range(4):
                if not o.k2nomf: mfma(a, ACC(i, t), b + 16 + 4 * t, b + 4 * i, ACC(i, t))
                if k % 2 == 1 and L: a(L.pop(0))
                k += 1
        for s in L: a(s)
        adv()
    nreal = 17 - (NB - 1)
    a("s_mov_b32 s48, 0")
    a("K2_LOOP:")
    for n in range(NB):
        step(n, W)
        a("s_add_u32 s48, s48, 1")
        if nreal % NB == (n + 1) % NB:
            a(f"s_cmp_eq_u32 s48, {nreal}"); a("s_cselect_b32 s26, 0, s26"); a("s_cselect_b32 s30, 0, s30")
        if 17 % NB == (n + 1) % NB and n != NB - 1:
            a("s_cmp_eq_u32 s48, 17"); a("s_cbranch_scc1 K2_LEND")
    if 17 % NB == 0:
        a("s_cmp_lg_u32 s48, 17"); a("s_cbranch_scc1 K2_LOOP")
    else:
        a("s_branch K2_LOOP")
    a("K2_LEND:")
    if o.k2rep:
        a("s_cmp_lg_u32 s74, 0"); a("s_cbranch_scc1 K2_REPD")
        a("s_waitcnt vmcnt(0)"); a("s_barrier")
        a.stamp(4)
        a("s_mov_b32 s36, s70"); a("s_mov_b32 s37, s71"); a("s_mov_b32 s26, s72"); a("s_mov_b32 s30, s73"); a("s_mov_b32 s74, 1")
        a("s_branch K2_REP")
        a("K2_REPD:")
    a("buffer_load_dword v88, v6, s[40:43], s56 offen")
    a("buffer_load_dwordx4 v[92:95], v90, s[32:35], s57 offen")
    a("buffer_load_dwordx4 v[96:99], v90, s[32:35], s57 offen offset:64")
    a("buffer_load_dwordx2 v[100:101], v91, s[32:35], s57 offen offset:128")
    if o.stamps: a.stamp(1)
    a("v_mul_u32_u24 v4, 2560, v4"); a("v_add_u32 v6, v4, v90"); a("v_add_u32 v7, v4, v91")
    a("s_mul_i32 s56, s55, 1280"); a("s_add_u32 s56, s56, s57")
    a("s_mul_i32 s58, s3, 20480"); a("v_add_u32 v4, s58, v2")
    a("s_mul_i32 s58, s3, 5120"); a("v_add_u32 v5, s58, v2")
    a("s_nop 4")
    for i in range(4):
        for t in range(5): a(f"ds_write_b128 v4, {vr(ACC(i,t))} offset:{(i*5+t)*1024}")
    a("s_waitcnt lgkmcnt(0)"); a("s_barrier")
    P = lambda w, t: 8 + (w * 5 + t) * 4
    for w in range(3):
        for t in range(5): a(f"ds_read_b128 {vr(P(w,t))}, v5 offset:{w*20480+t*1024}")
    a("v_add_u32 v5, 61440, v5")
    a("s_waitcnt vmcnt(0)")
    for k in range(10):
        s = 92 + k
        a(f"v_lshlrev_b32 v{104+2*k}, 16, v{s}"); a(f"v_and_b32 v{105+2*k}, 0xffff0000, v{s}")
    a("s_waitcnt lgkmcnt(5)")
    for t in range(5): a(f"ds_read_b128 {vr(P(3,t))}, v5 offset:{t*1024}")
    a("v_sub_f32 v89, 1.0, v88")
    B2 = lambda t, r: 104 + (t * 4 + r)
    for t in range(5):
        for r in range(4): a(f"v_fma_f32 v{B2(t,r)}, v89, v{B2(t,r)}, v{P(0,t)+r}")
    for t in range(5):
        for r in range(4): a(f"v_add_f32 v{B2(t,r)}, v{B2(t,r)}, v{P(1,t)+r}")
    a("s_waitcnt lgkmcnt(5)")
    for t in range(5):
        for r in range(4): a(f"v_add_f32 v{B2(t,r)}, v{B2(t,r)}, v{P(2,t)+r}")
    a("s_waitcnt lgkmcnt(0)")
    for t in range(5):
        for r in range(4): a(f"v_add_f32 v{B2(t,r)}, v{B2(t,r)}, v{P(3,t)+r}")
    for k in range(10): a(f"v_cvt_pk_bf16_f32 v{8+k}, v{104+2*k}, v{105+2*k}")
    a(f"buffer_store_dwordx4 v[8:11], v6, s[44:47], s56 offen{o.osc}")
    a(f"buffer_store_dwordx4 v[12:15], v6, s[44:47], s56 offen offset:64{o.osc}")
    a(f"buffer_store_dwordx2 v[16:17], v7, s[44:47], s56 offen offset:128{o.osc}")
    if o.stamps:
        a.stamp(2); a("s_waitcnt vmcnt(0)"); a.stamp(3)
        a.dump_stamps(5 if o.k2rep else 4, 1, 4, vtid="v0", tmp=("v20", "v21", "v22", "v23"))
    a("K2_EXIT:"); a("s_endpgm")

def gen(o):
    global HALFREAD, GV
    HALFREAD = o.halfread; GV = o.gv
    a = Asm()
    k1(a, o); (k2v2 if o.k2v == 2 else k2)(a, o)
    a("CODE_END:")
    if o.k2dup: a.launch.append(a.launch[-1])
    if o.l1f: a.L = [l.replace("offen lds", "offen" + o.l1f + " lds") for l in a.L]
    if o.noload: a.L = [l for l in a.L if not (l.endswith("offen lds") and "s[68:71]" not in l)]
    return a.text()

if __name__ == "__main__":
    o = Opt()
    out = "gated_mix__sliding_local_dilated__dense_activation_gelu__prompt.s"
    for arg in sys.argv[1:]:
        if arg.startswith("out="): out = arg[4:]
        else:
            k, v = arg.split("=")
            cur = getattr(o, k)
            setattr(o, k, (" " + v.replace("+", " ") if v else "") if isinstance(cur, str) else type(cur)(int(v)))
    open(out, "w").write(gen(o))
```

```python
import sys, math, re
from asmlib import *

WS_A = 0
WS_B = 9 << 20
WS_G = 12 << 20
NEGINF = "0xff800000"
SC = " sc1"

class Opt:
    stamps = False
    k2map = 1
    rot = True
    sc = " sc1"
    osc = ""
    qsc = " sc1"
    trace = 0
    l2f = ""
    l1f = ""
    nocomp = False
    noload = False
    nohalo = 0
    halfread = False
    k2v = 1
    nb = 6
    rot2 = 0
    pf2 = 0
    pfw = 0
    k2rep = 0
    gv = 0
    pf1 = 0
    pfs = 2
    k2dma = 0
    k2nomf = 0
    k2dup = 0
    pipe = 1
    pd = 0
    pl = 3
    pr = 0
    cw = 6
    dry = 0
    lay = 0
    nt = 8
    dry2 = 0
    l0 = 0
    pfd = 0
    hs = 2
    sj2 = 1
    pfg = 1
    rq = 7420
    tlb = 0
    bal = 0
    pfb = 0
    pfa = 0
    mld = 0
    pfp = 0
    cwl = 1
    hv = 0
    slp = 3
    prio = 3
    ml = 2

class LQ:
    def __init__(self, a):
        self.a = a; self.q = []
    def issue(self, tag):
        self.q.append(tag)
        assert len(self.q) <= 15, "too many outstanding lds ops"
    def wait(self, tag):
        if tag not in self.q: return
        last = max(i for i, t in enumerate(self.q) if t == tag)
        n = len(self.q) - 1 - last
        self.a(f"s_waitcnt lgkmcnt({n})")
        self.q = self.q[last + 1:]
    def waitall(self):
        self.a("s_waitcnt lgkmcnt(0)"); self.q = []

def srd(a, dst, lo, add=0, size=0x7fffffff):
    if add:
        a(f"s_add_u32 s{dst}, s{lo}, {add}"); a(f"s_addc_u32 s{dst+1}, s{lo+1}, 0")
        a(f"s_and_b32 s{dst+1}, s{dst+1}, 0xffff")
    else:
        a(f"s_mov_b32 s{dst}, s{lo}"); a(f"s_and_b32 s{dst+1}, s{lo+1}, 0xffff")
    a(f"s_mov_b32 s{dst+2}, {size}"); a(f"s_mov_b32 s{dst+3}, 0x00020000")

def vr(b, n=4, t="v"):
    return f"{t}[{b}:{b+n-1}]"

def mfma(a, d, x, y, c, dt="v", xt="a", yt="a"):
    cs = c if isinstance(c, str) else vr(c, 4, dt)
    a(f"v_mfma_f32_16x16x32_bf16 {vr(d,4,dt)}, {vr(x,4,xt)}, {vr(y,4,yt)}, {cs}")

QST = 49152
QX = 32768
QH = 30720
MST = 40960
MX = 24576
MGATE = 3 * MST
MSIDE = MGATE + 2048
EXB = QST
K1LDS = 3 * QST

def x_voffs(a, dst, tmp):
    t0, t1, t2 = tmp, tmp + 1, tmp + 2
    a(f"v_lshrrev_b32 v{t0}, 3, v1")
    a(f"v_lshrrev_b32 v{t1}, 4, v1")
    a(f"v_and_b32 v{t2}, 7, v1")
    a("s_lshl_b32 s60, s59, 5"); a("s_add_u32 s60, s60, s58")
    a("s_mul_i32 s60, s60, 1280")
    a(f"v_mul_u32_u24 v{t0}, 2560, v{t0}")
    a(f"v_add_u32 v{t0}, s60, v{t0}")
    for s in range(4):
        if s & 1:
            a(f"v_or_b32 v{dst+s}, 4, v{t1}")
            a(f"v_xor_b32 v{dst+s}, v{dst+s}, v{t2}")
        else:
            a(f"v_xor_b32 v{dst+s}, v{t1}, v{t2}")
        a(f"v_lshl_add_u32 v{dst+s}, v{dst+s}, 4, v{t0}")
        add = (16 * (s & 1) + (s >> 1)) * 1280
        if add: a(f"v_add_u32 v{dst+s}, {add}, v{dst+s}")

def x_read_addr(a, d0, d1, region, tmp, wave=True):
    t0, t1 = tmp, tmp + 1
    a(f"v_and_b32 v{t0}, 15, v1")
    a(f"v_lshrrev_b32 v{t1}, 1, v{t0}")
    a(f"v_lshrrev_b32 v{d0}, 4, v1")
    a(f"v_xor_b32 v{d0}, v{d0}, v{t1}")
    a(f"v_lshlrev_b32 v{d0}, 4, v{d0}")
    a(f"v_lshl_add_u32 v{d0}, v{t0}, 7, v{d0}")
    if wave:
        a("s_lshl_b32 s60, s59, 12"); a(f"s_add_u32 s60, s60, {region}")
        a(f"v_add_u32 v{d0}, s60, v{d0}")
    else:
        a(f"v_add_u32 v{d0}, {region}, v{d0}")
    a(f"v_xor_b32 v{d1}, 64, v{d0}")

def slot0(a, d, tmp):
    a(f"v_lshrrev_b32 v{d}, 5, v1"); a(f"v_lshlrev_b32 v{d}, 4, v{d}")
    a(f"v_bfe_u32 v{tmp}, v1, 2, 3")
    a(f"v_add_u32 v{d}, v{d}, v{tmp}")

def adv_stage(a, sreg, st):
    a(f"s_add_u32 s{sreg}, s{sreg}, {st}"); a(f"s_cmp_eq_u32 s{sreg}, {3*st}"); a(f"s_cselect_b32 s{sreg}, 0, s{sreg}")

def adv_kd(a, sreg):
    a(f"s_add_u32 s{sreg}, s{sreg}, 1"); a(f"s_cmp_eq_u32 s{sreg}, 10"); a(f"s_cselect_b32 s{sreg}, 0, s{sreg}")

TR_OFF = 210 << 20
def trace(a, o, vreg, idx):
    if not o.trace: return
    if o.trace in (2, 5) and isinstance(idx, str): return
    a("s_memrealtime s[98:99]")
    if isinstance(idx, str): a(f"s_mov_b32 m0, {idx}"); idx = "m0"
    a("s_waitcnt lgkmcnt(0)"); a(f"v_writelane_b32 v{vreg}, s98, {idx}")
def trace_clk(a, o, vreg, idx):
    if not o.trace: return
    a("s_memtime s[98:99]"); a("s_waitcnt lgkmcnt(0)"); a(f"v_writelane_b32 v{vreg}, s98, {idx}")
    a("s_memrealtime s[98:99]"); a("s_waitcnt lgkmcnt(0)"); a(f"v_writelane_b32 v{vreg}, s98, {idx+1}")
def trace_dump(a, o, vreg, wsp, launch, tmp):
    if not o.trace: return
    a("s_lshl_b32 s84, s2, 3"); a("s_add_u32 s84, s84, s3"); a("s_lshl_b32 s84, s84, 8")
    a(f"s_add_u32 s86, s{wsp}, {TR_OFF + launch*(1<<20)}"); a(f"s_addc_u32 s87, s{wsp+1}, 0")
    a("s_add_u32 s86, s86, s84"); a("s_addc_u32 s87, s87, 0")
    a(f"v_lshlrev_b32 v{tmp}, 2, v1")
    a(f"global_store_dword v{tmp}, v{vreg}, s[86:87]")

def k1(a, o):
    a.begin("gm1_kernel", 256, 512, K1LDS, vgpr=208, agpr=48)
    L_exit = "K1_EXIT"
    a("s_cmp_ge_u32 s2, 256"); a(f"s_cbranch_scc1 {L_exit}")
    if o.stamps: a.stamp(0)
    if o.lay == 1:
        a("s_getpc_b64 s[80:81]"); a("K1_PC:")
    a("s_load_dwordx4 s[4:7], s[0:1], 0")
    if o.lay == 1:
        a("s_bitcmp1_b32 s2, 7"); a("s_cselect_b32 s82, K1_ML-K1_PC-128, 0")
        a("s_add_u32 s84, s80, s82"); a("s_addc_u32 s85, s81, 0")
    a("s_load_dwordx8 s[12:19], s[0:1], 32")
    if o.lay == 1:
        for k in range(o.nt): a(f"s_load_dword s86, s[84:85], {128*(k+1)}")
    a("s_load_dwordx2 s[8:9], s[0:1], 16")
    a("s_load_dwordx2 s[20:21], s[0:1], 64")
    a("s_load_dwordx2 s[22:23], s[0:1], 88")
    if o.tlb & 1: a("s_load_dwordx2 s[10:11], s[0:1], 72")
    a("v_and_b32 v1, 63, v0"); a("v_lshrrev_b32 v2, 6, v0")
    a("s_and_b32 s50, s2, 7"); a("s_lshr_b32 s51, s2, 3")
    a("v_readfirstlane_b32 s3, v2")
    a("s_and_b32 s52, s51, 7"); a("s_lshr_b32 s53, s51, 3")
    a("s_and_b32 s54, s50, 1"); a("s_lshl_b32 s54, s54, 3"); a("s_add_u32 s54, s54, s52")
    if o.lay == 2:
        a("s_cmp_ge_u32 s3, 4"); a("s_cbranch_scc1 K1_NT")
        a("s_getpc_b64 s[80:81]"); a("K1_PC:")
        a("s_bitcmp1_b32 s2, 7"); a("s_cselect_b32 s82, K1_ML-K1_PC-128, 0")
        a("s_add_u32 s84, s80, s82"); a("s_addc_u32 s85, s81, 0")
        for k in range(o.nt): a(f"s_load_dword s86, s[84:85], {128*(k+1)}")
        a("s_lshl_b32 s82, s51, 2"); a("s_add_u32 s82, s82, s3"); a("s_lshl_b32 s82, s82, 8")
        a("s_min_u32 s82, s82, CODE_END-K1_PC-132"); a("s_add_u32 s84, s80, s82"); a("s_addc_u32 s85, s81, 0")
        a("s_load_dword s86, s[84:85], 0"); a("s_load_dword s86, s[84:85], 128")
        a("K1_NT:")
    if o.lay == 1:
        a("s_lshl_b32 s82, s51, 3"); a("s_add_u32 s82, s82, s3"); a("s_lshl_b32 s82, s82, 7")
        a("s_min_u32 s82, s82, CODE_END-K1_PC-4"); a("s_add_u32 s84, s80, s82"); a("s_addc_u32 s85, s81, 0")
        a("s_load_dword s86, s[84:85], 0")
    a("s_and_b32 s55, s50, 6"); a("s_and_b32 s56, s53, 1"); a("s_add_u32 s55, s55, s56")
    if o.rot and o.rq:
        a("s_mul_i32 s56, s52, 5"); a("s_lshr_b32 s56, s56, 2"); a("s_lshl_b32 s57, s53, 2"); a(f"s_lshr_b32 s57, 0x{o.rq:04d}, s57")
        a("s_and_b32 s57, s57, 15"); a("s_add_u32 s42, s56, s57")
        a("s_sub_u32 s56, s42, 10"); a("s_cmp_ge_u32 s42, 10"); a("s_cselect_b32 s42, s56, s42")
    elif o.rot:
        a("s_mul_i32 s56, s52, 5"); a("s_mul_i32 s57, s53, 10"); a("s_add_u32 s56, s56, s57"); a("s_lshr_b32 s42, s56, 2")
        a("s_sub_u32 s56, s42, 10"); a("s_cmp_ge_u32 s42, 10"); a("s_cselect_b32 s42, s56, s42")
    else:
        a("s_mov_b32 s42, 0")
    if o.trace: a("v_mov_b32 v0, 0")
    trace(a, o, 0, 0)
    a("s_lshl_b32 s58, s54, 7")
    a("s_and_b32 s59, s3, 3")
    if o.lay:
        a("s_cmp_lt_u32 s3, 4"); a("s_cbranch_scc1 K1_CONS")
        a("s_cmp_ge_u32 s53, 2"); a("s_cbranch_scc1 K1_ML")
        a("K1_QL:")
        qkv_loader(a, o)
        a("K1_ML:")
        mlp_loader(a, o)
        a("K1_CONS:")
        a("s_cmp_ge_u32 s53, 2"); a("s_cbranch_scc1 K1_MC")
        qkv_consumer(a, o)
        a("K1_MC:")
        mlp_consumer2(a, o)
        a(f"{L_exit}:"); a("s_endpgm")
        return
    a("s_cmp_ge_u32 s53, 2"); a("s_cbranch_scc1 K1_MLP")
    a("s_cmp_ge_u32 s3, 4"); a("s_cbranch_scc1 K1_QL")
    qkv_consumer(a, o)
    a("K1_QL:")
    qkv_loader(a, o)
    a("K1_MLP:")
    a("s_cmp_ge_u32 s3, 4"); a("s_cbranch_scc1 K1_ML")
    (mlp_consumer2 if o.pipe else mlp_consumer)(a, o)
    a("K1_ML:")
    mlp_loader(a, o)
    a(f"{L_exit}:"); a("s_endpgm")

HALFREAD = False
GV = 0
def gemm_stage(a, ntile, wread, xaddr, acc, wfirst, D=6, XB=24):
    lq = LQ(a)
    NP = 2; ft = "a"; FB = 0
    if GV == 5:
        NP = 4; ntile = (ntile + 1) // 2; D = 4; XB = 16
        acc0 = acc; acc = lambda p, T: acc0(0, 0) + (p * ntile + T) * 4
    if GV == 4: ft = "v"; FB = 160 if ntile == 15 else 128; D = 6; XB = 24
    if GV == 3: D = 7; XB = 28
    def rdx(half, p):
        a(f"ds_read_b128 {vr(FB+XB+(half*NP+p)*4,4,ft)}, v{xaddr[half]} offset:{p*2048}"); lq.issue(("x", half, p))
    def rdw(f):
        half, T = divmod(f, ntile)
        if HALFREAD and (f & 1): return
        for h in range(2):
            va, imm = wread(half, h, T)
            a(f"ds_read_b64_tr_b16 {vr(FB+(f%D)*4+2*h,2,ft)}, v{va} offset:{imm}"); lq.issue(("w", f))
    nf = 2 * ntile
    rdx(0, 0); rdw(0)
    for p in range(1, NP): rdx(0, p)
    for f in range(1, D): rdw(f)
    for f in range(nf):
        half, T = divmod(f, ntile)
        if GV == 2:
            if f % 2 == 0: lq.wait(("w", min(f + 1, nf - 1)))
        else: lq.wait(("w", f))
        if T == 0: lq.wait(("x", half, 0))
        for p in range(NP):
            if T == 0 and p >= 1: lq.wait(("x", half, p))
            W = FB + (f % D) * 4; X = FB + XB + (half * NP + p) * 4
            if wfirst(T): mfma(a, acc(p, T), W, X, acc(p, T), xt=ft, yt=ft)
            else: mfma(a, acc(p, T), X, W, acc(p, T), xt=ft, yt=ft)
        if f + D < nf:
            rdw(f + D)
        if NP == 2:
            if f == ntile - D - 1: rdx(1, 0)
            if f == ntile - D: rdx(1, 1)
        else:
            if 0 <= f - (ntile - D - 2) < 4: rdx(1, f - (ntile - D - 2))


def gemm_loop(a, o, name, ntile, NP, wread, xaddr, acc, wfirst, advance, D, lead, rate=1, hrate=2, xoff=0, extra=None):
    from collections import deque
    lq = LQ(a)
    XB = 4 * D
    fifo = deque()
    def rdx(half, p):
        def fn():
            if p == NP: a(f"ds_read_b128 {vr(XB+(2*NP+half)*4,4,'a')}, v{xaddr[half]}")
            else: a(f"ds_read_b128 {vr(XB+(half*NP+p)*4,4,'a')}, v{xaddr[half]} offset:{xoff+p*2048}")
            lq.issue(("x", half, p))
        fifo.append(fn)
    def rdw(f):
        half, T = divmod(f, ntile)
        for h in range(2):
            def fn(h=h):
                va, imm = wread(half, h, T)
                a(f"ds_read_b64_tr_b16 {vr((f%D)*4+2*h,2,'a')}, v{va} offset:{imm}"); lq.issue(("w", f))
            fifo.append(fn)
    def drain(n):
        while fifo and n > 0:
            fifo.popleft()(); n -= 1
    nf = 2 * ntile
    assert nf % D == 0
    fs = nf - lead; c = D - lead
    def head():
        rdx(0, 0); rdw(0)
        for p in range(1, NP): rdx(0, p)
        for f in range(1, c): rdw(f)
        if extra: rdx(0, NP)
    a("s_mov_b32 s48, 10")
    trace(a, o, 0, 10)
    a("s_barrier")
    trace(a, o, 0, 26)
    trace_clk(a, o, 0, 40)
    head()
    for f in range(c, D): rdw(f)
    drain(99)
    a(f"{name}_LOOP:")
    for f in range(nf):
        half, T = divmod(f, ntile)
        if f == fs:
            drain(99)
            lq.waitall()
            if o.trace == 1: trace(a, o, 0, "s48")
            if o.dry: a(f"s_cbranch_execz {name}_NB")
            a("s_barrier")
            if o.dry: a(f"{name}_NB:")
            if o.trace == 1: a("s_add_u32 s97, s48, 16"); trace(a, o, 0, "s97")
            head()
        if f < fs:
            lq.wait(("w", f))
            if T == 0: lq.wait(("x", half, 0))
        for p in range(NP):
            if T == 0 and p >= 1 and f < fs: lq.wait(("x", half, p))
            W = (f % D) * 4; X = XB + (half * NP + p) * 4
            if wfirst(T): mfma(a, acc(p, T), W, X, acc(p, T))
            else: mfma(a, acc(p, T), X, W, acc(p, T))
            if p == NP - 1 and extra and T in extra:
                drain(1)
                if f < fs: lq.wait(("x", half, NP))
                X = XB + (2 * NP + half) * 4
                if wfirst(T): mfma(a, extra[T], W, X, extra[T])
                else: mfma(a, extra[T], X, W, extra[T])
            if p == NP - 1:
                if f + D < nf: rdw(f + D)
                elif f >= fs: rdw(c + f - fs)
                k = f - max(0, ntile - D - NP + 1)
                if 0 <= k < NP + (1 if extra else 0): rdx(1, k)
                if f + D == nf - 1:
                    for ins in advance() + ["s_sub_u32 s48, s48, 1"]: fifo.append(lambda ins=ins: a(ins))
                if f == nf - 1: a("s_cmp_lg_u32 s48, 0")
            drain(99 if (f == nf - 1 and p == NP - 1) else (hrate if (f >= fs or f + D >= nf - 1 or len(fifo) > 2) else rate))
    a(f"s_cbranch_scc1 {name}_LOOP")
    trace_clk(a, o, 0, 42)

def adv_list(sreg, st):
    return [f"s_add_u32 s{sreg}, s{sreg}, {st}", f"s_cmp_eq_u32 s{sreg}, {3*st}", f"s_cselect_b32 s{sreg}, 0, s{sreg}"]

def k1_prefetch(a, o, tag, wait=False):
    if not o.pf1:
        if wait: a("s_waitcnt vmcnt(0)")
        return
    S0 = o.pfs
    l1 = f"PF1_{tag}"; l2 = f"PF2_{tag}"; ld = f"PFD_{tag}"
    if o.pfd: a(f"s_sleep {o.pfd}")
    a("s_cmp_eq_u32 s3, 1"); a(f"s_cbranch_scc1 {l1}")
    a("s_cmp_eq_u32 s3, 2"); a(f"s_cbranch_scc1 {l2}")
    if wait:
        a("s_cmp_lg_u32 s3, 3"); a(f"s_cbranch_scc1 PF0_{tag}"); a("s_waitcnt vmcnt(0)"); a(f"s_branch {ld}"); a(f"PF0_{tag}:")
    else:
        a("s_cmp_eq_u32 s3, 3"); a(f"s_cbranch_scc1 {ld}")
    srd(a, 80, 4, 0, 2048 * 1280)
    a("s_and_b32 s60, s50, 1"); a("s_lshl_b32 s60, s60, 10"); a("s_lshl_b32 s61, s51, 5"); a("s_add_u32 s60, s60, s61"); a("s_mul_i32 s60, s60, 1280")
    a("v_lshrrev_b32 v201, 1, v1"); a("v_mul_u32_u24 v201, 1280, v201"); a("v_and_b32 v202, 1, v1"); a("v_lshl_add_u32 v201, v202, 6, v201")
    for kd in range(S0, 10):
        a(f"buffer_load_dword v200, v201, s[80:83], s60 offen offset:{kd*128}")
        if o.pfp and kd < 9: a(f"s_sleep {o.pfp}")
    if wait: a(f"s_waitcnt vmcnt({10-S0})")
    a(f"s_branch {ld}")
    for lab, ptr, rowb, nsec, segn, segb, pairb in ((l1, 6, 3840, 15, 5, 1280, 320), (l2, 12, 3072, 12, 12, 0, 768)):
        a(f"{lab}:")
        srd(a, 80, ptr, 0, 640 * rowb)
        a("v_and_b32 v201, 31, v1"); a(f"v_min_u32 v201, {2*nsec-1}, v201")
        a(f"v_cmp_le_u32 vcc, {nsec}, v201"); a("s_nop 1"); a("v_cndmask_b32 v202, 0, 1, vcc"); a(f"v_mul_u32_u24 v203, {nsec}, v202"); a("v_sub_u32 v201, v201, v203")
        a("v_lshrrev_b32 v203, 5, v1"); a("v_lshl_add_u32 v202, v203, 6, v202"); a(f"v_mul_u32_u24 v202, {rowb}, v202")
        if segb:
            a("v_mul_u32_u24 v203, 52, v201"); a("v_lshrrev_b32 v203, 8, v203")
            a(f"v_mul_u32_u24 v203, {segb - segn*64}, v203"); a("v_add_u32 v202, v202, v203")
        a("v_lshl_add_u32 v201, v201, 6, v202")
        a(f"s_lshr_b32 s60, s50, 1"); a(f"s_mul_i32 s60, s60, {pairb}"); a(f"s_mul_i32 s61, s51, {2*rowb}"); a("s_add_u32 s60, s60, s61")
        a(f"s_add_u32 s60, s60, {S0*64*rowb}"); a("v_add_u32 v201, s60, v201")
        R = list(range(S0, 10, 2))
        for kd in R:
            a(f"buffer_load_dword v200, v201, s[80:83], 0 offen"); a(f"v_add_u32 v201, {128*rowb}, v201")
            if o.pfp and kd != R[-1]: a(f"s_sleep {2*o.pfp}")
        if wait: a(f"s_waitcnt vmcnt({len(R)})")
        if lab == l1: a(f"s_branch {ld}")
    a(f"{ld}:")

def tlb_warm(a, o, ptr, size):
    if not (o.tlb & 1): return
    srd(a, 80, ptr, 0, size)
    a("s_and_b32 s60, s51, 15"); a("s_lshl_b32 s60, s60, 2"); a("s_add_u32 s60, s60, s59"); a("s_lshl_b32 s60, s60, 18")
    a("v_lshlrev_b32 v201, 12, v1"); a("v_add_u32 v201, s60, v201")
    a("buffer_load_dword v200, v201, s[80:83], 0 offen")

def code_warm(a, o):
    if not o.cw: return
    n = o.cw
    a("s_getpc_b64 s[92:93]")
    a("CWL_%d:" % a.uid); lab = "CWL_%d" % a.uid; a.uid += 1
    a(f"s_sub_u32 s92, s92, {lab}-gm1_kernel"); a("s_subb_u32 s93, s93, 0")
    a("s_lshl_b32 s94, s51, 2"); a("s_add_u32 s94, s94, s59"); a(f"s_mul_i32 s94, s94, {64*n}")
    a("s_min_u32 s94, s94, CODE_END-gm1_kernel-%d" % (64 * n))
    a("s_add_u32 s92, s92, s94"); a("s_addc_u32 s93, s93, 0")
    for k in range(n): a(f"s_load_dword s95, s[92:93], {64*k}")

def qkv_consumer(a, o):
    if not o.cwl: code_warm(a, o)
    ACC = lambda p, T: 8 + (p * 15 + T) * 4
    QM = lambda p, h: 128 + p * 16 + h * 4
    KP = [160, 48]; VP = lambda p, T: (28 if p == 0 else 88) + 4 * T
    KQ = [108, 118]
    BO = 170; BP = [174, 178]; MO = 182; ONES = 184
    OWN = [[8, 12, 16, 20], [24, 84, 58, 62]]
    PRV = [[68, 72, 76, 80], [188, 192, 196, 200]]
    slot0(a, 2, 5)
    a("v_mul_u32_u24 v2, 480, v2"); a("v_and_b32 v5, 3, v1"); a("v_lshl_add_u32 v2, v5, 3, v2")
    if o.pipe: x_read_addr(a, 3, 4, QH, 5, wave=False)
    else: x_read_addr(a, 3, 4, QX, 5)
    if not o.dry:
        for r in range(8, 160): a(f"v_mov_b32 v{r}, 0")
    for r in range(4): a(f"v_mov_b32 v{ONES+r}, 0x3f803f80")
    a("v_and_b32 v5, 15, v1"); a("v_lshrrev_b32 v6, 4, v1"); a("v_lshlrev_b32 v6, 2, v6")
    a("s_mov_b32 s60, 9"); a("s_mov_b32 s61, 15"); a("s_mov_b32 s62, 9")
    a("s_cmp_eq_u32 s59, 0"); a("s_cselect_b32 s60, 1, s60"); a("s_cselect_b32 s61, 7, s61")
    a("s_or_b32 s63, s59, s58"); a("s_cmp_eq_u32 s63, 0"); a("s_cselect_b32 s60, 99, s60"); a("s_cselect_b32 s62, 99, s62")
    a(f"v_mov_b32 v{MO}, 0"); a(f"v_mov_b32 v{MO+1}, 0"); a(f"v_mov_b32 v204, {NEGINF}")
    for r in range(4):
        a(f"v_add_u32 v7, {r}, v6")
        a("v_sub_u32 v205, v5, v7")
        a("v_cmp_ge_u32 vcc, 7, v205")
        a("v_sub_u32 v206, v7, v5")
        a(f"v_mov_b32 v207, {'0xffff' if r % 2 == 0 else '0xffff0000'}")
        a(f"v_cndmask_b32 v{BO+r}, v204, 0, vcc")
        a(f"v_cndmask_b32 v207, 0, v207, vcc")
        a(f"v_or_b32 v{MO+r//2}, v{MO+r//2}, v207")
        a("v_cmp_le_i32 vcc, s60, v206"); a("v_cmp_ge_i32 s[64:65], s61, v7"); a("s_nop 0"); a("s_and_b64 vcc, vcc, s[64:65]")
        a("s_nop 1")
        a(f"v_cndmask_b32 v{BP[0]+r}, v204, 0, vcc")
        a("v_cmp_le_i32 vcc, s62, v206"); a("s_nop 1")
        a(f"v_cndmask_b32 v{BP[1]+r}, v204, 0, vcc")
    def setmasks():
        a("s_mov_b32 s66, 0xffff0000"); a("s_mov_b32 s67, -1"); a("s_mov_b32 s68, 0"); a("s_mov_b32 s69, -1")
        a("s_mov_b32 s70, 0"); a("s_mov_b32 s71, 0xffff0000")
        for T in range(3): a(f"s_not_b64 s[{72+2*T}:{73+2*T}], s[{66+2*T}:{67+2*T}]")
    ALL = "s[78:79]" if o.dry else "-1"
    if o.dry:
        for k in range(66, 80, 2): a(f"s_mov_b64 s[{k}:{k+1}], 0")
    else: setmasks()
    HI = lambda T: ALL if T == 0 else f"s[{64+2*T}:{65+2*T}]"
    LO = lambda T: ALL if T == 4 else f"s[{70+2*T}:{71+2*T}]"
    def qmark(k):
        if not o.dry: return
        a("s_cbranch_execz QC_REAL")
        if k < 4: a(f"QC_Q{k}:")
    a("s_waitcnt lgkmcnt(0)")
    if o.cwl: code_warm(a, o)
    k1_prefetch(a, o, "Q")
    tlb_warm(a, o, 22, WS_G + 8192)
    srd(a, 24, 22, WS_A, 0 if o.dry else 32 * 68 * 4096)
    a("s_lshl_b32 s36, s54, 1"); a("s_lshr_b32 s37, s59, 1"); a("s_add_u32 s36, s36, s37"); a("s_mul_i32 s36, s36, 68")
    a("s_mul_i32 s37, s55, 5"); a("s_lshr_b32 s37, s37, 1"); a("s_add_u32 s36, s36, s37"); a("s_lshl_b32 s36, s36, 12")
    a("s_and_b32 s37, s59, 1"); a("s_lshl_b32 s37, s37, 11"); a("s_add_u32 s36, s36, s37")
    a("s_add_u32 s37, s36, 4096"); a("s_add_u32 s38, s36, 8192")
    a("s_mov_b32 s47, 0"); a("s_mov_b32 s48, 10")
    a("v_mov_b32 v5, v2"); a("v_mov_b32 v6, v3"); a("v_mov_b32 v7, v4")
    if o.pipe:
        advq = lambda: adv_list(47, QST) + ["v_add_u32 v5, s47, v2", "v_add_u32 v6, s47, v3", "v_add_u32 v7, s47, v4"]
        if o.dry:
            a("s_mov_b32 s48, 1"); a("s_mov_b64 exec, 0")
            for w in range(0, 4): a(f"s_cmp_eq_u32 s59, {w}"); a(f"s_cbranch_scc1 QC{w}_LOOP")
            a("QC_REAL:")
            a("s_mov_b64 exec, -1"); a("s_mov_b64 s[78:79], -1"); setmasks(); a(f"s_mov_b32 s26, {32*68*4096}"); a("s_mov_b32 s47, 0")
            a("s_waitcnt lgkmcnt(0)"); a("s_nop 7"); a("s_nop 7")
            for r in range(8, 160): a(f"v_mov_b32 v{r}, 0")
        for r in range(188, 200): a(f"v_mov_b32 v{r}, 0")
        for w in range(1, 4): a(f"s_cmp_eq_u32 s59, {w}"); a(f"s_cbranch_scc1 QC{w}_ENT")
        for w in range(4):
            a(f"QC{w}_ENT:")
            ex = {5 + w: 188, 10 + w: 192}
            if w == 0: ex[9] = 196
            if w == 1: ex[14] = 196
            gemm_loop(a, o, f"QC{w}", 15, 2, lambda half, h, T: (5, half * 15360 + h * 3840 + T * 32), [6, 7], ACC, lambda T: T < 10, advq, o.pd or 6, o.pl or 4, o.pr or 1,
                      xoff=2048 + 4096 * w, extra=ex)
            a(f"v_lshlrev_b32 v5, 3, v1"); a(f"v_add_u32 v5, {EXB}, v5"); a("s_nop 7")
            for b in (188, 192, 196)[:len(ex)]:
                a(f"v_cvt_pk_bf16_f32 v{b}, v{b}, v{b+1}"); a(f"v_cvt_pk_bf16_f32 v{b+1}, v{b+2}, v{b+3}")
            for p in range(2):
                a(f"ds_write_b64 v5, v[188:189] offset:{p*5120+w*512}")
                a(f"ds_write_b64 v5, v[192:193] offset:{p*5120+2560+w*512}")
                if w == 0: a(f"ds_write_b64 v5, v[196:197] offset:{p*5120+2048}")
                if w == 1: a(f"ds_write_b64 v5, v[196:197] offset:{p*5120+2560+2048}")
            if o.dry and w > 0: a(f"s_cbranch_execz QC_Q{w}")
            if w < 3: a("s_branch QC_EPI")
        a("QC_EPI:")
    else:
        a("QC_LOOP:")
        trace(a, o, 0, "s48")
        a("s_barrier")
        if o.trace: a("s_add_u32 s97, s48, 16")
        trace(a, o, 0, "s97")
        if not o.nocomp: gemm_stage(a, 15, lambda half, h, T: (5, half * 15360 + h * 3840 + T * 32), [6, 7], ACC, lambda T: T < 10)
        adv_stage(a, 47, QST)
        a("v_add_u32 v5, s47, v2"); a("v_add_u32 v6, s47, v3"); a("v_add_u32 v7, s47, v4")
        a("s_sub_u32 s48, s48, 1"); a("s_cmp_lg_u32 s48, 0"); a("s_cbranch_scc1 QC_LOOP")
    if o.stamps: a.stamp(1)
    trace(a, o, 0, 32)
    def pack(dst, src):
        a(f"v_cvt_pk_bf16_f32 v{dst}, v{src}, v{src+1}"); a(f"v_cvt_pk_bf16_f32 v{dst+1}, v{src+2}, v{src+3}")
    a("s_mul_i32 s60, s59, 10240"); a(f"s_add_u32 s60, s60, {EXB}")
    a("v_lshl_add_u32 v6, v1, 3, s60"); a("v_add_u32 v5, 10240, v6")
    a("v_lshlrev_b32 v7, 4, v1")
    a("s_nop 4")
    lq = LQ(a)
    skipw = a.label("QC_NOW")
    for p in range(2):
        for T in range(5): pack(KP[p] + 2 * T, ACC(p, 5 + T))
        for T in range(5): pack(VP(p, T), ACC(p, 10 + T))
    a("s_cmp_eq_u32 s59, 3"); a(f"s_cbranch_scc1 {skipw}")
    for p in range(2):
        for T in range(5): a(f"ds_write_b64 v5, {vr(KP[p]+2*T,2)} offset:{p*5120+T*512}")
        for T in range(5): a(f"ds_write_b64 v5, {vr(VP(p,T),2)} offset:{p*5120+2560+T*512}")
    a(f"{skipw}:")
    for T in range(5):
        if T <= 3:
            a(f"s_mov_b64 exec, {HI(T)}")
            for p in range(2): pack(QM(p, T), ACC(p, T))
        if T >= 1:
            a(f"s_mov_b64 exec, {LO(T)}")
            for p in range(2): pack(QM(p, T - 1) + 2, ACC(p, T))
    a(f"s_mov_b64 exec, {ALL}")
    a("s_nop 1")
    for p in range(2):
        for h in range(4): mfma(a, OWN[p][h], KP[p] + 2 * h, QM(p, h), BO, xt="v", yt="v")
    if o.dry: a("s_cbranch_execz QC_REAL")
    a("s_waitcnt lgkmcnt(0)")
    trace(a, o, 0, 33)
    a("s_barrier")
    if o.dry: a("QC_Q1:")
    trace(a, o, 0, 34)
    for p in range(2):
        for T in range(5): a(f"ds_read_b64 {vr(KQ[p]+2*T,2)}, v6 offset:{p*5120+T*512}"); lq.issue(("k", p))
    for p in range(2):
        for T in range(5):
            if p == 1 and T == 0: lq.wait(("k", 0))
            a(f"ds_read_b64 {vr(VP(p,T)+2,2)}, v6 offset:{p*5120+2560+T*512}"); lq.issue(("v", p))
    for p in range(2):
        lq.wait(("k", p))
        for h in range(4): mfma(a, PRV[p][h], KQ[p] + 2 * h, QM(p, h), BP[p], xt="v", yt="v")
    a("s_nop 7")
    MXA = [160 + i for i in range(8)]
    MXB = [48 + i for i in range(8)]
    for p in range(2):
        for h in range(4):
            for r in range(4): a(f"v_max_f32 v{OWN[p][h]+r}, v{OWN[p][h]+r}, v{PRV[p][h]+r}")
    for p in range(2):
        for h in range(4):
            b = OWN[p][h]
            a(f"v_max3_f32 v{MXA[p*4+h]}, v{b}, v{b+1}, v{b+2}")
    for p in range(2):
        for h in range(4):
            a(f"v_max_f32 v{MXA[p*4+h]}, v{MXA[p*4+h]}, v{OWN[p][h]+3}")
    a("s_nop 1")
    A_ = MXA
    for k in range(4): a(f"v_permlane32_swap_b32 v{A_[2*k]}, v{A_[2*k+1]}")
    a("s_nop 0")
    for k in range(4): a(f"v_max_f32 v{A_[2*k]}, v{A_[2*k]}, v{A_[2*k+1]}")
    a("s_nop 1")
    for k in range(2): a(f"v_permlane16_swap_b32 v{A_[4*k]}, v{A_[4*k+2]}")
    a("s_nop 1")
    for k in range(2): a(f"v_max_f32 v{A_[4*k]}, v{A_[4*k]}, v{A_[4*k+2]}")
    a(f"s_mov_b32 s60, {hex(f32bits(20 ** -0.5 * math.log2(math.e)))}")
    for k in range(2): a(f"v_mul_f32 v{A_[4*k]}, s60, v{A_[4*k]}")
    for k in range(2): a(f"v_mov_b32 v{A_[4*k+2]}, v{A_[4*k]}")
    a("s_nop 1")
    for k in range(2): a(f"v_permlane16_swap_b32 v{A_[4*k]}, v{A_[4*k+2]}")
    a("s_nop 1")
    for k in range(4): a(f"v_mov_b32 v{A_[2*k+1]}, v{A_[2*k]}")
    a("s_nop 1")
    for k in range(4): a(f"v_permlane32_swap_b32 v{A_[2*k]}, v{A_[2*k+1]}")
    a("s_nop 1")
    for p in range(2):
        for h in range(4):
            for r in range(4): a(f"v_fma_f32 v{OWN[p][h]+r}, v{OWN[p][h]+r}, s60, -v{A_[p*4+h]}")
    qmark(2)
    for p in range(2):
        for h in range(4):
            for r in range(4): a(f"v_exp_f32 v{OWN[p][h]+r}, v{OWN[p][h]+r}")
    for p in range(2):
        for h in range(4): pack(OWN[p][h], OWN[p][h])
    for p in range(2):
        for h in range(4):
            for k in range(2):
                a(f"v_and_b32 v{PRV[p][h]+k}, v{OWN[p][h]+k}, v{MO+k}")
                a(f"v_bfi_b32 v{PRV[p][h]+2+k}, v{MO+k}, 0, v{OWN[p][h]+k}")
    lq.waitall()
    a("s_nop 0")
    OH = [[128 + 4 * T for T in range(4)], [108, 112, 116, 120]]
    OL = [[None] + [144 + 4 * (T - 1) for T in range(1, 5)], [None, 124, 160, 164, 204]]
    for p in range(2):
        for h in range(4): mfma(a, OWN[p][h], ONES, PRV[p][h], "0", xt="v", yt="v")
    for p in range(2):
        for T in range(5):
            if T <= 3: mfma(a, OH[p][T], VP(p, T), PRV[p][T], "0", xt="v", yt="v")
            if T >= 1: mfma(a, OL[p][T], VP(p, T), PRV[p][T - 1], "0", xt="v", yt="v")
    for p in range(2):
        for h in range(4): a(f"v_rcp_f32 v{OWN[p][h]}, v{OWN[p][h]}")
    qmark(3)
    a("s_nop 4")
    OUT = lambda p, T: OH[p][T] if T <= 3 else OL[p][4]
    for T in range(5):
        if T <= 3:
            a(f"s_mov_b64 exec, {HI(T)}")
            for p in range(2):
                for r in range(4): a(f"v_mul_f32 v{OUT(p,T)+r}, v{OH[p][T]+r}, v{OWN[p][T]}")
        if T >= 1:
            a(f"s_mov_b64 exec, {LO(T)}")
            for p in range(2):
                for r in range(4): a(f"v_mul_f32 v{OUT(p,T)+r}, v{OL[p][T]+r}, v{OWN[p][T-1]}")
    a(f"s_mov_b64 exec, {ALL}")
    if o.hs == 1: a("v_lshlrev_b32 v6, 3, v1")
    if o.hs == 2:
        tt = OWN[0][0]
        a("v_and_b32 v6, 32, v1"); a(f"v_and_b32 v{tt}, 15, v1"); a(f"v_lshl_or_b32 v6, v{tt}, 1, v6")
        a(f"v_bfe_u32 v{tt}, v1, 4, 1"); a(f"v_or_b32 v6, v6, v{tt}"); a("v_lshlrev_b32 v6, 3, v6")
    odd = a.label("QC_ODD"); done = a.label("QC_DONE")
    a("s_and_b32 s60, s55, 1"); a("s_cmp_eq_u32 s60, 1"); a(f"s_cbranch_scc1 {odd}")
    def fin(pairs, single, skap, shalf):
        for p in range(2):
            for (T0, kap) in pairs:
                d = OUT(p, T0)
                pack(d, d); pack(d + 2, OUT(p, T0 + 1))
                a(f"buffer_store_dwordx4 {vr(d)}, v7, s[24:27], s{36+kap} offen offset:{p*1024}{o.qsc}")
            d = OUT(p, single); pack(d, d)
            if o.hs: a(f"buffer_store_dwordx2 {vr(d,2)}, v6, s[24:27], s{36+skap} offen offset:{p*1024+shalf*512}{o.qsc}")
            else: a(f"buffer_store_dwordx2 {vr(d,2)}, v7, s[24:27], s{36+skap} offen offset:{p*1024+shalf*8}{o.qsc}")
    fin([(0, 0), (2, 1)], 4, 2, 0)
    a(f"s_branch {done}")
    a(f"{odd}:")
    fin([(1, 1), (3, 2)], 0, 0, 1)
    a(f"{done}:")
    qmark(4)
    trace(a, o, 0, 35)
    if o.trace: a("s_waitcnt vmcnt(0)")
    trace(a, o, 0, 36)
    trace_dump(a, o, 0, 22, 0, 8)
    if o.stamps:
        a.stamp(2); a("s_waitcnt vmcnt(0)"); a.stamp(3)
        a.dump_stamps(4, 0, 22, vtid="v0", tmp=("v8", "v9", "v10", "v11"))
    a("s_endpgm")

def f32bits(x):
    import struct
    return struct.unpack("<I", struct.pack("<f", x))[0]

def qkv_loader(a, o):
    if o.prio: a(f"s_setprio {o.prio}")
    x_voffs(a, 16, 2)
    def wv(dst, s):
        a(f"s_lshl_b32 s60, s59, 8"); a(f"s_add_u32 s60, s60, {s*64}")
        a(f"v_add_u32 v2, s60, v1")
        a("v_mul_u32_u24 v3, 2185, v2"); a("v_lshrrev_b32 v3, 16, v3")
        a("v_mul_u32_u24 v4, 30, v3"); a("v_sub_u32 v4, v2, v4")
        a("v_mul_u32_u24 v5, 205, v4"); a("v_lshrrev_b32 v5, 11, v5")
        a("v_and_b32 v6, 0x13, v3"); a("v_and_b32 v7, 4, v3"); a("v_lshl_or_b32 v6, v7, 1, v6")
        a("v_bfe_u32 v7, v3, 3, 1"); a("v_lshl_or_b32 v6, v7, 2, v6")
        a("v_mul_u32_u24 v6, 3840, v6"); a("v_mul_u32_u24 v5, 1120, v5")
        a("v_lshl_add_u32 v6, v4, 4, v6"); a("v_add_u32 v6, v6, v5")
        a(f"v_add_u32 v{dst}, s61, v6")
    a("s_mul_i32 s61, s55, 160")
    for s in range(3): wv(10 + s, s)
    hl = a.label("QL_H"); hd = a.label("QL_HD")
    a("s_cmp_eq_u32 s59, 3"); a(f"s_cbranch_scc1 {hl}")
    wv(13, 3); a("v_mov_b32 v14, v13")
    a(f"s_branch {hd}")
    a(f"{hl}:")
    a("v_lshrrev_b32 v2, 3, v1"); a("v_lshlrev_b32 v2, 1, v2"); a("s_sub_u32 s60, s58, 16"); a("v_add_u32 v2, s60, v2")
    a("v_lshrrev_b32 v3, 4, v1"); a("v_and_b32 v4, 7, v1")
    for e in range(2):
        a(f"v_add_u32 v5, {e}, v2"); a("v_max_i32 v5, 0, v5"); a("v_mul_u32_u24 v5, 1280, v5")
        a(f"v_or_b32 v6, {4*e}, v3"); a("v_xor_b32 v6, v6, v4"); a(f"v_lshl_add_u32 v{13+e}, v6, 4, v5")
    a(f"{hd}:")
    a("s_waitcnt lgkmcnt(0)")
    srd(a, 24, 6, 0, 640 * 3840); srd(a, 28, 4, 0, 2048 * 1280)
    a("s_cmp_eq_u32 s59, 3")
    for k in range(4): a(f"s_cselect_b32 s{32+k}, s{28+k}, s{24+k}")
    a("s_lshl_b32 s45, s59, 12")
    a(f"s_add_u32 s46, s45, {QX}")
    a("s_add_u32 s43, s45, 3072"); a("s_add_u32 s44, s45, 18432")
    a("s_cmp_eq_u32 s59, 3"); a(f"s_cselect_b32 s43, {QH}, s43"); a(f"s_cselect_b32 s44, {QH+1024}, s44")
    a("s_mov_b32 s41, 0")
    def issue(fill=None):
        k = [0]
        def F():
            if fill: fill(k[0])
            k[0] += 1
        a("s_mul_i32 s36, s42, 245760"); a("s_add_u32 s37, s36, 122880"); a("s_lshl_b32 s38, s42, 7")
        a("s_cmp_eq_u32 s59, 3"); a("s_cselect_b32 s39, s38, s36"); a("s_cselect_b32 s40, s38, s37")
        a("s_add_u32 s49, s41, s46")
        for s in range(4):
            a(f"s_add_u32 m0, s49, {s*1024}"); a("s_nop 0")
            a(f"buffer_load_dwordx4 v{16+s}, s[28:31], s38 offen lds"); F()
        a("s_add_u32 s49, s41, s45")
        for s in range(3):
            a(f"s_add_u32 m0, s49, {s*1024}"); a("s_nop 0")
            a(f"buffer_load_dwordx4 v{10+s}, s[24:27], s36 offen lds"); F()
        a("s_add_u32 m0, s41, s43"); a("s_nop 0"); a("buffer_load_dwordx4 v13, s[32:35], s39 offen lds"); F()
        for s in range(3):
            a(f"s_add_u32 m0, s49, {s*1024+15360}"); a("s_nop 0")
            a(f"buffer_load_dwordx4 v{10+s}, s[24:27], s37 offen lds"); F()
        a("s_add_u32 m0, s41, s44"); a("s_nop 0"); a("buffer_load_dwordx4 v14, s[32:35], s40 offen lds"); F()
        adv_kd(a, 42); adv_stage(a, 41, QST)
    trace(a, o, 0, 30)
    if o.trace == 5:
        issue(lambda k: trace(a, o, 0, 44 + k) if k in (0, 3, 4, 7, 11) else None); issue(lambda k: trace(a, o, 0, 56 + k // 3) if k in (0, 3, 7) else None)
        trace(a, o, 0, 31)
        a("s_waitcnt vmcnt(12)"); trace(a, o, 0, 60); a("s_waitcnt vmcnt(0)"); trace(a, o, 0, 61)
    elif o.l0:
        issue(); trace(a, o, 0, 31); a("s_waitcnt vmcnt(0)"); trace(a, o, 0, 60); a("s_barrier"); issue(); issue()
    else:
        issue(); issue()
    if not o.l0: trace(a, o, 0, 31)
    if o.pipe:
        a(f"s_mov_b32 s48, {7 if o.l0 else 8}")
        a("QL_LOOP:")
        a("s_waitcnt vmcnt(12)")
        if o.trace: a("s_add_u32 s97, s48, 2")
        trace(a, o, 0, "s97")
        a("s_barrier")
        if o.trace: a("s_add_u32 s97, s48, 18")
        trace(a, o, 0, "s97")
        issue()
        a("s_sub_u32 s48, s48, 1"); a("s_cmp_lg_u32 s48, 0"); a("s_cbranch_scc1 QL_LOOP")
        a("s_waitcnt vmcnt(12)"); trace(a, o, 0, 2); a("s_barrier")
        a("s_waitcnt vmcnt(0)"); trace(a, o, 0, 1); a("s_barrier")
        trace(a, o, 0, 36)
        trace_dump(a, o, 0, 22, 0, 8)
        a("s_endpgm")
        return
    slot0(a, 20, 2)
    a("v_mul_u32_u24 v20, 480, v20"); a("v_and_b32 v2, 3, v1"); a("v_lshl_add_u32 v20, v2, 3, v20")
    a("s_and_b32 s60, s59, 1"); a("s_mul_i32 s60, s60, 160"); a("s_add_u32 s60, s60, 288"); a("v_add_u32 v21, s60, v20")
    a("s_lshl_b32 s60, s59, 5"); a("s_add_u32 s60, s60, 160"); a("v_add_u32 v20, s60, v20")
    x_read_addr(a, 22, 23, QH, 2, wave=False)
    for r in range(32, 48): a(f"v_mov_b32 v{r}, 0")
    a("s_mov_b32 s47, 0")
    def halo(iss=None):
        if o.nohalo == 1:
            if iss: iss()
            return
        lq = LQ(a)
        R = []
        for half in range(2):
            b = half * 16
            R.append((half, f"ds_read_b128 {vr(b+12,4,'a')}, v{26+half}"))
            for h in range(2):
                im = half * 15360 + h * 3840
                R.append((half, f"ds_read_b64_tr_b16 {vr(b+2*h,2,'a')}, v24 offset:{im}"))
                R.append((half, f"ds_read_b64_tr_b16 {vr(b+4+2*h,2,'a')}, v24 offset:{im+160}"))
                R.append((half, f"ds_read_b64_tr_b16 {vr(b+8+2*h,2,'a')}, v25 offset:{im}"))
        if o.hv & 1: R = [(hf, re.sub(r"a\[(\d+):(\d+)\]", lambda m: f"v[{int(m.group(1))+64}:{int(m.group(2))+64}]", ins)) for hf, ins in R]
        if o.hv & 4: R = [(hf, ins if i % 2 == 0 else "s_nop 0") for i, (hf, ins) in enumerate(R)]
        if o.hv & 8: R = [(hf, re.sub(r", v2\d", ", v28", re.sub(r"offset:\d+", "", ins))) for i, (hf, ins) in enumerate(R)]
        def mm(half):
            b = half * 16
            if not (o.hv & 2): lq.wait(half)
            else: lq.q = []
            if o.nohalo == 2: return
            mfma(a, 32, b, b + 12, 32); mfma(a, 36, b + 12, b + 4, 36); mfma(a, 40, b + 8, b + 12, 40); mfma(a, 44, b + 12, b + 8, 44)
        cnt = [1, 2, 1, 2, 1, 1, 2, 1, 2, 1, 0, 0]
        def fill(k):
            for _ in range(cnt[k]):
                hf, ins = R.pop(0); a(ins); lq.issue(hf)
            if k == 6: mm(0)
            if k == 9:
                adv_stage(a, 47, QST)
                a("v_add_u32 v24, s47, v20"); a("v_add_u32 v25, s47, v21"); a("v_add_u32 v26, s47, v22"); a("v_add_u32 v27, s47, v23")
            if k == 11: mm(1)
        if iss: iss(fill)
        else:
            for k in range(12):
                if k < 11: a(f"s_sleep 1")
                fill(k)
    a("v_mov_b32 v28, 0")
    a("v_mov_b32 v24, v20"); a("v_mov_b32 v25, v21"); a("v_mov_b32 v26, v22"); a("v_mov_b32 v27, v23")
    a("s_mov_b32 s48, 8")
    a("QL_LOOP:")
    a("s_waitcnt vmcnt(12)")
    if o.trace: a("s_add_u32 s97, s48, 2")
    trace(a, o, 0, "s97")
    a("s_barrier")
    if o.trace: a("s_add_u32 s97, s48, 18")
    if o.trace == 4: trace(a, o, 0, "s97")
    halo(issue)
    if o.trace != 4: trace(a, o, 0, "s97")
    a("s_sub_u32 s48, s48, 1"); a("s_cmp_lg_u32 s48, 0"); a("s_cbranch_scc1 QL_LOOP")
    a("s_waitcnt vmcnt(12)"); trace(a, o, 0, 2); a("s_barrier"); halo()
    a("s_waitcnt vmcnt(0)"); trace(a, o, 0, 1); a("s_barrier"); halo()
    if o.pipe: a("s_barrier")
    a("s_lshl_b32 s60, s59, 9"); a(f"s_add_u32 s60, s60, {EXB}")
    a("v_lshl_add_u32 v2, v1, 3, s60")
    a(f"v_lshlrev_b32 v3, 3, v1"); a(f"v_add_u32 v3, {EXB}, v3")
    a("s_nop 4")
    for k in range(4):
        b = 32 + 4 * k
        a(f"v_cvt_pk_bf16_f32 v{b}, v{b}, v{b+1}"); a(f"v_cvt_pk_bf16_f32 v{b+1}, v{b+2}, v{b+3}")
    for p in range(2):
        a(f"ds_write_b64 v2, v[32:33] offset:{p*5120}")
        a(f"ds_write_b64 v2, v[36:37] offset:{p*5120+2560}")
    l1 = a.label("QL_C"); l2 = a.label("QL_C")
    a("s_cmp_lg_u32 s59, 0"); a(f"s_cbranch_scc1 {l1}")
    for p in range(2): a(f"ds_write_b64 v3, v[40:41] offset:{p*5120+2048}")
    a(f"{l1}:")
    a("s_cmp_lg_u32 s59, 1"); a(f"s_cbranch_scc1 {l2}")
    for p in range(2): a(f"ds_write_b64 v3, v[44:45] offset:{p*5120+2560+2048}")
    a(f"{l2}:")
    a("s_waitcnt lgkmcnt(0)"); a("s_barrier")
    trace(a, o, 0, 36)
    trace_dump(a, o, 0, 22, 0, 8)
    a("s_endpgm")

def mlp_consumer(a, o):
    ACC = lambda p, T: 16 + (p * 12 + T) * 4
    a("s_waitcnt lgkmcnt(0)")
    srd(a, 28, 14, 0, 3072)
    a("v_lshrrev_b32 v9, 4, v1"); a("v_lshlrev_b32 v9, 3, v9"); a("s_mul_i32 s60, s55, 384")
    for T in range(12):
        a(f"buffer_load_dwordx2 {vr(ACC(1,T),2)}, v9, s[28:31], s60 offen offset:{T*32}")
    k1_prefetch(a, o, "M", True)
    slot0(a, 8, 9)
    a("v_bfe_u32 v9, v8, 1, 2")
    a("v_mul_u32_u24 v8, 384, v8"); a("v_and_b32 v10, 3, v1"); a("v_lshl_add_u32 v8, v10, 3, v8")
    for b in range(4):
        a(f"v_xor_b32 v10, {b}, v9"); a(f"v_lshl_add_u32 v{2+b}, v10, 5, v8")
    x_read_addr(a, 6, 7, MX, 9)
    srd(a, 24, 22, WS_A, 32 * 68 * 4096)
    a("s_lshl_b32 s36, s54, 1"); a("s_lshr_b32 s37, s59, 1"); a("s_add_u32 s36, s36, s37"); a("s_mul_i32 s36, s36, 68")
    a("s_mul_i32 s37, s55, 6"); a("s_add_u32 s37, s37, 20"); a("s_add_u32 s36, s36, s37"); a("s_lshl_b32 s36, s36, 12")
    a("s_and_b32 s37, s59, 1"); a("s_lshl_b32 s37, s37, 11"); a("s_add_u32 s36, s36, s37")
    for k in range(1, 6): a(f"s_add_u32 s{36+k}, s36, {4096*k}")
    for k in range(6): a(f"v_mov_b32 v{8+k}, v{2+k}")
    a("v_lshlrev_b32 v14, 4, v1")
    for T in range(12):
        s = ACC(1, T); d = ACC(0, T)
        a(f"v_lshlrev_b32 v{d}, 16, v{s}"); a(f"v_and_b32 v{d+1}, 0xffff0000, v{s}")
        a(f"v_lshlrev_b32 v{d+2}, 16, v{s+1}"); a(f"v_and_b32 v{d+3}, 0xffff0000, v{s+1}")
        for r in range(4): a(f"v_mov_b32 v{s+r}, v{d+r}")
    a("s_mov_b32 s47, 0"); a("s_mov_b32 s48, 10")
    if True:
        a("MC_LOOP:")
        trace(a, o, 0, "s48")
        a("s_barrier")
        if o.trace: a("s_add_u32 s97, s48, 16")
        trace(a, o, 0, "s97")
        if not o.nocomp: gemm_stage(a, 12, lambda half, h, T: (8 + (T & 3), half * 12288 + h * 3072 + (T >> 2) * 128), [12, 13], ACC, lambda T: True)
        adv_stage(a, 47, MST)
        for k in range(6): a(f"v_add_u32 v{8+k}, s47, v{2+k}")
        a("s_sub_u32 s48, s48, 1"); a("s_cmp_lg_u32 s48, 0"); a("s_cbranch_scc1 MC_LOOP")
    if o.stamps: a.stamp(1)
    trace(a, o, 0, 32)
    c1 = -2.0 * math.sqrt(2.0 / math.pi) * math.log2(math.e)
    c2 = c1 * 0.044715
    a(f"s_mov_b32 s60, {hex(f32bits(c1))}"); a(f"s_mov_b32 s61, {hex(f32bits(c2))}")
    a("v_mov_b32 v15, s60")
    a("s_nop 4")
    TMP = 112
    for p in range(2):
        for kp in range(6):
            z = [ACC(p, 2 * kp) + r for r in range(8)]
            t = [TMP + ((p * 6 + kp) % 2) * 8 + r for r in range(8)]
            for r in range(8): a(f"v_mul_f32 v{t[r]}, v{z[r]}, v{z[r]}")
            for r in range(8): a(f"v_fma_f32 v{t[r]}, v{t[r]}, s61, v15")
            for r in range(8): a(f"v_mul_f32 v{t[r]}, v{t[r]}, v{z[r]}")
            for r in range(8): a(f"v_exp_f32 v{t[r]}, v{t[r]}")
            for r in range(8): a(f"v_add_f32 v{t[r]}, 1.0, v{t[r]}")
            for r in range(8): a(f"v_rcp_f32 v{t[r]}, v{t[r]}")
            for r in range(8): a(f"v_mul_f32 v{z[r]}, v{z[r]}, v{t[r]}")
            for k in range(4): a(f"v_cvt_pk_bf16_f32 v{z[k]}, v{z[2*k]}, v{z[2*k+1]}")
            a(f"buffer_store_dwordx4 {vr(z[0])}, v14, s[24:27], s{36+kp} offen offset:{p*1024}{o.sc}")
    if o.dry: a("s_cbranch_execz MC_REAL")
    if o.pfb:
        srd(a, 80, 22, WS_B, 8 * 68 * 5120)
        a("s_and_b32 s60, s50, 1"); a("s_mul_i32 s60, s60, 1392640"); a("s_and_b32 s61, s51, 15"); a("s_lshl_b32 s61, s61, 2"); a("s_add_u32 s61, s61, s59")
        a("s_mul_i32 s61, s61, 21760"); a("s_add_u32 s60, s60, s61"); a("v_lshlrev_b32 v201, 6, v1"); a("v_add_u32 v201, s60, v201")
        if o.pfb > 1: a(f"s_sleep {o.pfb}")
        for k in range(6):
            a("buffer_load_dword v200, v201, s[80:83], 0 offen"); a("v_add_u32 v201, 4096, v201")
    trace(a, o, 0, 35)
    if o.trace: a("s_waitcnt vmcnt(0)")
    trace(a, o, 0, 36)
    trace_dump(a, o, 0, 22, 0, 8)
    if o.stamps:
        a.stamp(2); a("s_waitcnt vmcnt(0)"); a.stamp(3)
        a.dump_stamps(4, 0, 22, vtid="v0", tmp=("v8", "v9", "v10", "v11"))
    a("s_endpgm")

def mlp_consumer2(a, o):
    if not o.cwl: code_warm(a, o)
    ACC = lambda p, T: 16 + (p * 6 + T) * 4
    a("s_and_b32 s57, s59, 1")
    if o.pfg:
        a("v_min_u32 v8, 23, v1"); a("v_mul_u32_u24 v9, 43, v8"); a("v_lshrrev_b32 v9, 8, v9")
        a("v_mul_u32_u24 v10, 6, v9"); a("v_sub_u32 v8, v8, v10"); a("v_mul_u32_u24 v9, 3840, v9")
        a("v_lshrrev_b32 v10, 1, v8"); a("v_mul_u32_u24 v10, 1280, v10"); a("v_add_u32 v9, v9, v10")
        a("v_and_b32 v8, 1, v8"); a("v_mul_u32_u24 v8, 156, v8"); a("v_add_u32 v9, v9, v8")
        a("s_lshr_b32 s60, s52, 2"); a("s_mul_i32 s60, s60, 5"); a("s_and_b32 s61, s53, 1"); a("s_lshl_b32 s61, s61, 1")
        a("s_add_u32 s60, s60, s61"); a("s_add_u32 s60, s60, 4")
        a("s_sub_u32 s61, s60, 10"); a("s_cmp_ge_u32 s60, 10"); a("s_cselect_b32 s60, s61, s60")
        a("s_lshl_b32 s60, s60, 2"); a("s_and_b32 s61, s52, 3"); a("s_add_u32 s60, s60, s61"); a("s_lshl_b32 s60, s60, 2")
        a("s_add_u32 s60, s60, s59"); a("s_mul_i32 s60, s60, 15360"); a("s_mul_i32 s61, s55, 160"); a("s_add_u32 s60, s60, s61")
    a("s_waitcnt lgkmcnt(0)")
    if o.pfg:
        srd(a, 84, 6, 0, 640 * 3840)
        a("buffer_load_dword v200, v9, s[84:87], s60 offen")
    if o.pfg & 2:
        a("v_min_u32 v8, 11, v1"); a("v_mul_u32_u24 v9, 86, v8"); a("v_lshrrev_b32 v9, 8, v9")
        a("v_mul_u32_u24 v10, 3, v9"); a("v_sub_u32 v8, v8, v10"); a("v_mul_u32_u24 v9, 3072, v9"); a("v_lshl_add_u32 v9, v8, 7, v9")
        a("s_lshr_b32 s60, s52, 2"); a("s_mul_i32 s60, s60, 5"); a("s_and_b32 s61, s53, 1"); a("s_mul_i32 s61, s61, 3")
        a("s_add_u32 s60, s60, s61"); a("s_add_u32 s60, s60, 8")
        a("s_sub_u32 s61, s60, 10"); a("s_cmp_ge_u32 s60, 10"); a("s_cselect_b32 s60, s61, s60")
        a("s_lshl_b32 s60, s60, 2"); a("s_and_b32 s61, s52, 3"); a("s_add_u32 s60, s60, s61"); a("s_lshl_b32 s60, s60, 2")
        a("s_add_u32 s60, s60, s59"); a("s_mul_i32 s60, s60, 12288"); a("s_mul_i32 s61, s55, 384"); a("s_add_u32 s60, s60, s61")
        srd(a, 84, 12, 0, 640 * 3072)
        a("buffer_load_dword v200, v9, s[84:87], s60 offen")
    if o.pfg & 4:
        a("v_and_b32 v8, 31, v1"); a("v_mul_u32_u24 v8, 1280, v8")
        a("s_add_u32 s60, s42, 2"); a("s_sub_u32 s61, s60, 10"); a("s_cmp_ge_u32 s60, 10"); a("s_cselect_b32 s60, s61, s60")
        a("s_lshl_b32 s60, s60, 7"); a("s_lshl_b32 s61, s59, 5"); a("s_add_u32 s61, s61, s58"); a("s_mul_i32 s61, s61, 1280"); a("s_add_u32 s60, s60, s61")
        srd(a, 84, 4, 0, 2048 * 1280)
        a("buffer_load_dword v200, v8, s[84:87], s60 offen")
    if o.cwl: code_warm(a, o)
    srd(a, 28, 14, 0, 3072)
    a("v_lshrrev_b32 v9, 4, v1"); a("v_lshlrev_b32 v9, 3, v9"); a("s_mul_i32 s60, s55, 384"); a("s_mul_i32 s61, s57, 192"); a("s_add_u32 s60, s60, s61")
    B1 = (lambda T: 128 + 2 * T) if o.dry else (lambda T: ACC(1, T))
    for T in range(6):
        a(f"buffer_load_dwordx2 {vr(B1(T),2)}, v9, s[28:31], s60 offen offset:{T*32}")
    if o.pf1: k1_prefetch(a, o, "M", True)
    slot0(a, 8, 9)
    a("v_bfe_u32 v9, v8, 1, 2")
    a("v_mul_u32_u24 v8, 384, v8"); a("v_and_b32 v10, 3, v1"); a("v_lshl_add_u32 v8, v10, 3, v8")
    a("s_lshl_b32 s60, s57, 1"); a("v_xor_b32 v9, s60, v9"); a("s_lshl_b32 s60, s57, 7"); a("v_add_u32 v8, s60, v8")
    for b in range(4):
        if b == 2: a("v_add_u32 v8, s60, v8")
        a(f"v_xor_b32 v10, {b}, v9"); a(f"v_lshl_add_u32 v{2+b}, v10, 5, v8")
    x_read_addr(a, 6, 7, MX, 9, wave=False)
    a("s_lshr_b32 s60, s59, 1"); a("s_lshl_b32 s60, s60, 13"); a("v_add_u32 v6, s60, v6"); a("v_add_u32 v7, s60, v7")
    srd(a, 24, 22, WS_A, 0 if o.dry else 32 * 68 * 4096)
    a("s_lshl_b32 s36, s54, 1"); a("s_lshr_b32 s37, s59, 1"); a("s_add_u32 s36, s36, s37"); a("s_mul_i32 s36, s36, 68")
    a("s_mul_i32 s37, s55, 6"); a("s_add_u32 s37, s37, 20"); a("s_add_u32 s36, s36, s37"); a("s_mul_i32 s37, s57, 3"); a("s_add_u32 s36, s36, s37")
    a("s_lshl_b32 s36, s36, 12")
    for k in range(1, 3): a(f"s_add_u32 s{36+k}, s36, {4096*k}")
    for k in range(6): a(f"v_mov_b32 v{8+k}, v{2+k}")
    a("v_lshlrev_b32 v14, 4, v1")
    if o.dry:
        a("s_mov_b32 s47, 0"); a("s_mov_b32 s48, 1"); a("s_mov_b64 exec, 0"); a("s_branch MC_LOOP")
        a("MC_REAL:")
        a("s_mov_b64 exec, -1"); a(f"s_mov_b32 s26, {32*68*4096}")
        a("s_waitcnt lgkmcnt(0)"); a("s_nop 7"); a("s_nop 7")
    if not o.pf1: a("s_waitcnt vmcnt(0)")
    for T in range(6):
        s = B1(T); d = ACC(0, T)
        a(f"v_lshlrev_b32 v{d}, 16, v{s}"); a(f"v_and_b32 v{d+1}, 0xffff0000, v{s}")
        a(f"v_lshlrev_b32 v{d+2}, 16, v{s+1}"); a(f"v_and_b32 v{d+3}, 0xffff0000, v{s+1}")
        for p in range(1, 4):
            for r in range(4): a(f"v_mov_b32 v{ACC(p,T)+r}, v{d+r}")
    a("s_mov_b32 s47, 0")
    tlb_warm(a, o, 10, 2048 * 1280)
    advm = lambda: adv_list(47, MST) + [f"v_add_u32 v{8+k}, s47, v{2+k}" for k in range(6)]
    gemm_loop(a, o, "MC", 6, 4, lambda half, h, T: (8 + (T & 3), half * 12288 + h * 3072 + (T >> 2) * 128), [12, 13], ACC, lambda T: True, advm, 4, o.ml, 1)
    if o.stamps: a.stamp(1)
    trace(a, o, 0, 32)
    c1 = -2.0 * math.sqrt(2.0 / math.pi) * math.log2(math.e)
    c2 = c1 * 0.044715
    a(f"s_mov_b32 s60, {hex(f32bits(c1))}"); a(f"s_mov_b32 s61, {hex(f32bits(c2))}")
    a("v_mov_b32 v15, s60")
    a("s_nop 4")
    TMP = 112
    if o.dry:
        a("s_cbranch_execnz MC_Q0")
        for w in range(1, 4): a(f"s_cmp_eq_u32 s59, {w}"); a(f"s_cbranch_scc1 MC_Q{w}")
    for p in range(4):
        if o.dry:
            if p: a("s_cbranch_execz MC_REAL")
            a(f"MC_Q{p}:")
        for kp in range(3):
            z = [ACC(p, 2 * kp) + r for r in range(8)]
            t = [TMP + ((p * 3 + kp) % 2) * 8 + r for r in range(8)]
            for r in range(8): a(f"v_mul_f32 v{t[r]}, v{z[r]}, v{z[r]}")
            for r in range(8): a(f"v_fma_f32 v{t[r]}, v{t[r]}, s61, v15")
            for r in range(8): a(f"v_mul_f32 v{t[r]}, v{t[r]}, v{z[r]}")
            for r in range(8): a(f"v_exp_f32 v{t[r]}, v{t[r]}")
            for r in range(8): a(f"v_add_f32 v{t[r]}, 1.0, v{t[r]}")
            for r in range(8): a(f"v_rcp_f32 v{t[r]}, v{t[r]}")
            for r in range(8): a(f"v_mul_f32 v{z[r]}, v{z[r]}, v{t[r]}")
            for k in range(4): a(f"v_cvt_pk_bf16_f32 v{z[k]}, v{z[2*k]}, v{z[2*k+1]}")
            a(f"buffer_store_dwordx4 {vr(z[0])}, v14, s[24:27], s{36+kp} offen offset:{p*1024}{o.sc}")
    if o.dry: a("s_cbranch_execz MC_REAL")
    if o.pfb:
        srd(a, 80, 22, WS_B, 8 * 68 * 5120)
        a("s_and_b32 s60, s50, 1"); a("s_mul_i32 s60, s60, 1392640"); a("s_and_b32 s61, s51, 15"); a("s_lshl_b32 s61, s61, 2"); a("s_add_u32 s61, s61, s59")
        a("s_mul_i32 s61, s61, 21760"); a("s_add_u32 s60, s60, s61"); a("v_lshlrev_b32 v201, 6, v1"); a("v_add_u32 v201, s60, v201")
        if o.pfb > 1: a(f"s_sleep {o.pfb}")
        for k in range(6):
            a("buffer_load_dword v200, v201, s[80:83], 0 offen"); a("v_add_u32 v201, 4096, v201")
    trace(a, o, 0, 35)
    if o.trace: a("s_waitcnt vmcnt(0)")
    trace(a, o, 0, 36)
    trace_dump(a, o, 0, 22, 0, 8)
    if o.stamps:
        a.stamp(2); a("s_waitcnt vmcnt(0)"); a.stamp(3)
        a.dump_stamps(4, 0, 22, vtid="v0", tmp=("v8", "v9", "v10", "v11"))
    a("s_waitcnt lgkmcnt(0)")
    a("s_endpgm")

def mlp_loader(a, o):
    if o.prio: a(f"s_setprio {o.prio}")
    x_voffs(a, 16, 2)
    a("s_mul_i32 s61, s55, 384"); a("s_mul_i32 s60, s59, 49152"); a("s_add_u32 s61, s61, s60")
    for b in range(3):
        a(f"v_add_u32 v2, {64*b}, v1")
        a("v_mul_u32_u24 v3, 2731, v2"); a("v_lshrrev_b32 v3, 16, v3")
        a("v_mul_u32_u24 v4, 24, v3"); a("v_sub_u32 v4, v2, v4")
        a("v_and_b32 v5, 6, v3"); a("v_xor_b32 v4, v4, v5")
        a("v_and_b32 v6, 3, v3"); a("v_and_b32 v7, 4, v3"); a("v_lshl_or_b32 v6, v7, 1, v6")
        a("v_mul_u32_u24 v6, 3072, v6"); a("v_lshl_add_u32 v6, v4, 4, v6")
        a(f"v_add_u32 v{10+b}, s61, v6")
    a("v_lshlrev_b32 v9, 4, v1")
    a("s_waitcnt lgkmcnt(0)")
    srd(a, 24, 12, 0, 640 * 3072); srd(a, 28, 4, 0, 2048 * 1280); srd(a, 32, 20, 0, 1280)
    a("s_mul_i32 s45, s59, 6144"); a("s_lshl_b32 s46, s59, 12"); a(f"s_add_u32 s46, s46, {MX}")
    a("s_mov_b32 s41, 0"); a("s_mov_b32 s43, s42")
    a("s_and_b32 s60, s59, 1"); a("s_lshl_b32 s60, s60, 10"); a("v_add_u32 v8, s60, v9"); a("v_min_u32 v8, 1264, v8")
    a(f"s_add_u32 m0, s60, {MGATE}"); a("s_nop 0")
    a("buffer_load_dwordx4 v8, s[32:35], 0 offen lds")
    def issue(fill=None):
        k = [0]
        def F():
            if fill: fill(k[0])
            k[0] += 1
        a("s_mul_i32 s36, s42, 196608"); a("s_add_u32 s37, s36, 12288"); a("s_lshl_b32 s38, s42, 7")
        a("s_add_u32 s49, s41, s46")
        for s in range(4):
            a(f"s_add_u32 m0, s49, {s*1024}"); a("s_nop 0")
            a(f"buffer_load_dwordx4 v{16+s}, s[28:31], s38 offen lds"); F()
        a("s_add_u32 s49, s41, s45")
        for e in range(2):
            for b in range(3):
                a(f"s_add_u32 m0, s49, {(3*e+b)*1024}"); a("s_nop 0")
                a(f"buffer_load_dwordx4 v{10+b}, s[24:27], s{36+e} offen lds"); F()
        adv_kd(a, 42); adv_stage(a, 41, MST)
    if o.mld: a(f"s_sleep {o.mld}")
    trace(a, o, 0, 30)
    issue()
    if not o.l0: issue()
    trace(a, o, 0, 31)
    x_read_addr(a, 22, 23, MX, 2)
    a("s_and_b32 s60, s55, 1"); a("s_lshl_b32 s60, s60, 11"); a("v_add_u32 v22, s60, v22"); a("v_add_u32 v23, s60, v23")
    a("v_lshrrev_b32 v20, 4, v1"); a("v_lshlrev_b32 v20, 4, v20"); a(f"v_add_u32 v20, {MGATE}, v20")
    for r in range(32, 40): a(f"v_mov_b32 v{r}, 0")
    a("s_mov_b32 s47, 0")
    a("s_lshr_b32 s80, s55, 1")
    def gate_adv():
        a("s_lshl_b32 s60, s43, 7")
        a("v_add_u32 v24, s60, v20"); a("v_add_u32 v25, s47, v22"); a("v_add_u32 v26, s47, v23")
    gate_adv()
    def gate(iss=None):
        if o.nohalo == 1:
            if iss: iss()
            return
        def fill(k):
            if k not in (2, 7): return
            sk = a.label("GSK")
            a("s_cmp_lg_u32 s80, s59"); a(f"s_cbranch_scc1 {sk}")
            if k == 2:
                for half in range(2):
                    a(f"ds_read_b128 {vr(half*8,4,'a')}, v24 offset:{half*64}")
                    a(f"ds_read_b128 {vr(half*8+4,4,'a')}, v{25+half}")
                adv_stage(a, 47, MST); adv_kd(a, 43); gate_adv()
            if k == 7:
                a("s_waitcnt lgkmcnt(0)")
                for half in range(2): mfma(a, 32 + 4 * half, half * 8, half * 8 + 4, 32 + 4 * half)
            a(f"{sk}:")
        if iss: iss(fill)
        else:
            a("s_sleep 2"); fill(2); fill(7)
    for s in range(5):
        a(f"v_add_u32 v2, {64*s}, v1")
        a("v_mul_u32_u24 v3, 6554, v2"); a("v_lshrrev_b32 v3, 16, v3")
        a("v_mul_u32_u24 v4, 10, v3"); a("v_sub_u32 v4, v2, v4")
        a("v_mul_u32_u24 v3, 1280, v3"); a(f"v_lshl_add_u32 v{40+s}, v4, 4, v3")
    a("s_mul_i32 s44, s59, 5120"); a(f"s_add_u32 s44, s44, {MSIDE}")
    a("v_lshrrev_b32 v2, 2, v1"); a("v_mul_u32_u24 v2, 160, v2"); a("v_add_u32 v2, s44, v2"); a("v_and_b32 v3, 3, v1")
    a("v_lshl_add_u32 v45, v3, 4, v2"); a("v_lshl_add_u32 v46, v3, 3, v2")
    a("s_lshl_b32 s62, s54, 3"); a("s_add_u32 s62, s62, s55")
    srd(a, 72, 22, WS_B, 8 * 68 * 5120)
    def side_issue():
        a("s_lshr_b32 s63, s62, 1"); a("s_and_b32 s64, s62, 1"); a("s_lshl_b32 s64, s64, 2"); a("s_add_u32 s64, s64, s59")
        a("s_cmp_lt_u32 s63, 20")
        a("s_cselect_b32 s68, s8, s16"); a("s_cselect_b32 s69, s9, s17"); a(f"s_mov_b32 s70, {1536*1280}"); a(f"s_cselect_b32 s70, {640*1280}, s70")
        a("s_cselect_b32 s65, 0, 20"); a("s_and_b32 s69, s69, 0xffff"); a("s_mov_b32 s71, 0x00020000")
        a("s_sub_u32 s65, s63, s65"); a("s_mul_i32 s65, s65, 40960"); a("s_mul_i32 s66, s64, 160"); a("s_add_u32 s65, s65, s66")
        for s in range(5):
            a(f"s_add_u32 m0, s44, {s*1024}"); a("s_nop 0")
            a(f"buffer_load_dwordx4 v{40+s}, s[68:71], s65 offen lds")
        a("s_mul_i32 s66, s64, 68"); a("s_add_u32 s66, s66, s63"); a("s_mul_i32 s66, s66, 5120"); a("s_add_u32 s67, s66, 4096")
        if o.sj2: a("s_add_u32 s92, s65, 1802240")
        if o.hs == 2:
            a("s_min_u32 s64, s63, 31"); a("s_bitcmp1_b32 0x21084, s64")
            a("s_mov_b32 s65, 2560"); a("s_cselect_b32 s64, 640, 0"); a("s_cselect_b32 s65, 640, s65")
            a("v_lshrrev_b32 v68, 4, v1"); a("v_mul_u32_u24 v68, s64, v68")
            a("v_add_u32 v69, v46, v68"); a("v_add_u32 v68, v45, v68")
            a("v_add_u32 v70, s65, v68"); a("v_add_u32 v71, s65, v69")
    def side_finish():
        for t in range(5):
            for e in range(2):
                if o.hs == 2:
                    if t < 4: a(f"ds_read_b64_tr_b16 {vr(48+4*t+2*e,2)}, v{68+2*e} offset:{(t>>1)*64+(t&1)*8}")
                    else: a(f"ds_read_b64_tr_b16 {vr(48+4*t+2*e,2)}, v{69+2*e} offset:128")
                elif t < 4: a(f"ds_read_b64_tr_b16 {vr(48+4*t+2*e,2)}, v45 offset:{e*2560+(t>>1)*64+(t&1)*8}")
                else: a(f"ds_read_b64_tr_b16 {vr(48+4*t+2*e,2)}, v46 offset:{e*2560+128}")
        a("s_waitcnt lgkmcnt(0)")
        for t in range(4): a(f"buffer_store_dwordx4 {vr(48+4*t)}, v9, s[72:75], s66 offen offset:{t*1024}{o.sc}")
        a(f"buffer_store_dwordx4 {vr(64)}, v9, s[72:75], s67 offen{o.sc}")
    if o.l0:
        a("s_waitcnt vmcnt(0)"); trace(a, o, 0, 60); a("s_barrier"); issue(); gate(issue)
    a(f"s_mov_b32 s48, {7 if o.l0 else 8}")
    a("ML_LOOP:")
    a("s_waitcnt vmcnt(10)")
    if o.trace: a("s_add_u32 s97, s48, 2")
    trace(a, o, 0, "s97")
    a("s_barrier")
    if o.trace: a("s_add_u32 s97, s48, 18")
    if o.trace == 4: trace(a, o, 0, "s97")
    gate(issue)
    if o.trace != 4: trace(a, o, 0, "s97")
    a("s_sub_u32 s48, s48, 1"); a("s_cmp_lg_u32 s48, 0"); a("s_cbranch_scc1 ML_LOOP")
    side_issue()
    a("s_waitcnt vmcnt(15)"); trace(a, o, 0, 2); a("s_barrier")
    if o.sj2:
        a("s_cmp_ge_u32 s62, 8"); a("s_cbranch_scc1 ML_NJ2")
        srd(a, 88, 16, 0, 1536 * 1280)
        a("s_add_u32 s81, s41, s45")
        for s_ in range(5):
            a(f"s_add_u32 m0, s81, {s_*1024}"); a("s_nop 0")
            a(f"buffer_load_dwordx4 v{40+s_}, s[88:91], s92 offen lds")
        a("s_sub_u32 s81, s81, s44"); a("v_add_u32 v72, s81, v45"); a("v_add_u32 v73, s81, v46")
        a("s_add_u32 s93, s66, 327680"); a("s_add_u32 s94, s93, 4096")
        a("ML_NJ2:")
    gate()
    if o.sj2:
        a("s_waitcnt vmcnt(10)"); a("s_cmp_lt_u32 s62, 8"); a("s_cbranch_scc1 ML_NJ3"); a("s_waitcnt vmcnt(5)"); a("ML_NJ3:")
    else: a("s_waitcnt vmcnt(5)")
    trace(a, o, 0, 1); a("s_barrier"); gate()
    if o.pipe: a("s_barrier")
    if o.sj2: a("s_waitcnt vmcnt(0)"); side_finish()
    lg = a.label("ML_NOG")
    a("s_cmp_lg_u32 s80, s59"); a(f"s_cbranch_scc1 {lg}")
    srd(a, 76, 22, WS_G, 8192)
    a("s_lshl_b32 s60, s59, 5"); a("s_add_u32 s60, s60, s58"); a("s_and_b32 s61, s55, 1"); a("s_add_u32 s60, s60, s61"); a("s_lshl_b32 s60, s60, 2")
    a("v_lshlrev_b32 v2, 3, v1")
    a("s_nop 4")
    a("v_add_f32 v32, v32, v36"); a("v_mul_f32 v32, 0xbfb8aa3b, v32")
    a("v_exp_f32 v32, v32"); a("s_nop 0")
    a("v_add_f32 v32, 1.0, v32")
    a("v_rcp_f32 v32, v32")
    a("s_mov_b64 exec, 0xffff"); a("s_nop 0")
    a(f"buffer_store_dword v32, v2, s[76:79], s60 offen{o.sc}")
    a("s_mov_b64 exec, -1")
    a(f"{lg}:")
    if o.sj2:
        a("s_cmp_ge_u32 s62, 8"); a("s_cbranch_scc1 K1_EXIT")
        for t in range(5):
            for e in range(2):
                if t < 4: a(f"ds_read_b64_tr_b16 {vr(76+4*t+2*e,2)}, v72 offset:{e*2560+(t>>1)*64+(t&1)*8}")
                else: a(f"ds_read_b64_tr_b16 {vr(76+4*t+2*e,2)}, v73 offset:{e*2560+128}")
        a("s_waitcnt lgkmcnt(0)")
        for t in range(4): a(f"buffer_store_dwordx4 {vr(76+4*t)}, v9, s[72:75], s93 offen offset:{t*1024}{o.sc}")
        a(f"buffer_store_dwordx4 {vr(92)}, v9, s[72:75], s94 offen{o.sc}")
        a("s_endpgm")
        return
    a("s_waitcnt vmcnt(0)")
    trace(a, o, 0, 33)
    side_finish()
    if o.trace: a("s_waitcnt vmcnt(0)")
    trace(a, o, 0, 36)
    trace_dump(a, o, 0, 22, 0, 8)
    a("s_cmp_ge_u32 s62, 8"); a("s_cbranch_scc1 K1_EXIT")
    a("s_add_u32 s62, s62, 128")
    side_issue()
    a("s_waitcnt vmcnt(0)")
    side_finish()
    a("s_endpgm")

def k2(a, o):
    a.begin("gm2_kernel", 256, 256, 102400 if o.bal else 81920, vgpr=148 if o.bal else 128, agpr=144)
    a("s_cmp_ge_u32 s2, 256"); a("s_cbranch_scc1 K2_EXIT")
    if o.stamps: a.stamp(0)
    a("s_load_dwordx2 s[4:5], s[0:1], 88")
    a("s_load_dwordx2 s[6:7], s[0:1], 56")
    a("s_load_dwordx2 s[8:9], s[0:1], 72")
    a("v_and_b32 v1, 63, v0"); a("v_lshrrev_b32 v2, 6, v0")
    a("s_and_b32 s50, s2, 7"); a("s_lshr_b32 s51, s2, 3")
    a("v_readfirstlane_b32 s3, v2")
    if o.k2map == 0:
        a("s_lshl_b32 s52, s50, 2"); a("s_lshr_b32 s53, s51, 3"); a("s_add_u32 s52, s52, s53"); a("s_and_b32 s53, s51, 7")
    else:
        a("s_lshr_b32 s52, s50, 1"); a("s_lshl_b32 s52, s52, 3"); a("s_lshr_b32 s53, s51, 2"); a("s_add_u32 s52, s52, s53")
        a("s_and_b32 s53, s50, 1"); a("s_lshl_b32 s53, s53, 2"); a("s_and_b32 s54, s51, 3"); a("s_add_u32 s53, s53, s54")
    if o.bal:
        a("s_mul_i32 s54, s3, 17"); a("s_mov_b32 s48, 3"); a("s_cmp_eq_u32 s3, 1"); a("s_cselect_b32 s49, 3, 0")
    else:
        a("s_lshl_b32 s54, s3, 4"); a("s_add_u32 s54, s54, 4"); a("s_cmp_eq_u32 s3, 0"); a("s_cselect_b32 s54, 0, s54")
        a("s_cselect_b32 s48, 4, 3")
    a("s_mul_i32 s36, s52, 68"); a("s_add_u32 s36, s36, s54"); a("s_lshl_b32 s36, s36, 12")
    a("s_mul_i32 s37, s53, 68"); a("s_add_u32 s37, s37, s54"); a("s_mul_i32 s37, s37, 5120")
    a("v_lshlrev_b32 v2, 4, v1"); a("v_add_u32 v3, 4096, v2")
    a("s_waitcnt lgkmcnt(0)")
    srd(a, 24, 4, WS_A, 32 * 68 * 4096); srd(a, 28, 4, WS_B, 8 * 68 * 5120)
    BUF = lambda n: (n % 4) * 36
    def loads(n):
        b = BUF(n)
        L = []
        for t in range(5):
            L.append(f"buffer_load_dwordx4 {vr(b+16+4*t,4,'a')}, v{2 if t<4 else 3}, s[28:31], s37 offen offset:{(t%4)*1024}{o.l2f}")
        for i in range(4):
            L.append(f"buffer_load_dwordx4 {vr(b+4*i,4,'a')}, v2, s[24:27], s36 offen offset:{i*1024}{o.l2f}")
        order = [L[5], L[0], L[6], L[1], L[7], L[2], L[8], L[3], L[4]]
        return order
    def adv(): a("s_add_u32 s36, s36, 4096"); a("s_add_u32 s37, s37, 5120")
    for n in range(3):
        for s in loads(n): a(s)
        adv()
    srd(a, 32, 6, 0, 1280); srd(a, 40, 4, WS_G, 8192); srd(a, 44, 8, 0, 2048 * 1280)
    if o.tlb & 2:
        a("s_cmp_lg_u32 s3, 3"); a("s_cbranch_scc1 K2_NT")
        a("v_min_u32 v4, 19, v1"); a("v_lshlrev_b32 v4, 12, v4"); a("s_mul_i32 s55, s52, 81920")
        a("buffer_load_dword v124, v4, s[44:47], s55 offen")
        a("K2_NT:")
    ACC = lambda i, t: 8 + (i * 5 + t) * 4
    for r in range(8, 88): a(f"v_mov_b32 v{r}, 0")
    def step(n, ld, wait):
        a(f"s_waitcnt vmcnt({wait})")
        b = BUF(n)
        L = loads(n + 3) if ld else []
        k = 0
        for t in range(5):
            for i in range(4):
                mfma(a, ACC(i, t), b + 16 + 4 * t, b + 4 * i, ACC(i, t))
                if k % 2 == 1 and L: a(L.pop(0))
                k += 1
        for s in L: a(s)
        if ld: adv()
    a("K2_LOOP:")
    for n in range(4):
        step(n, True, 18)
        if o.bal and n == 2:
            a("s_cmp_lg_u32 s48, s49"); a("s_cbranch_scc1 K2_NOFL")
            a("v_add_u32 v4, 81920, v2"); a("s_nop 7"); a("s_nop 7")
            for i in range(4):
                for t in range(5): a(f"ds_write_b128 v4, {vr(ACC(i,t))} offset:{(i*5+t)*1024}")
            a("s_waitcnt lgkmcnt(0)")
            for r in range(8, 88): a(f"v_mov_b32 v{r}, 0")
            a("s_nop 1")
            a("K2_NOFL:")
    a("s_sub_u32 s48, s48, 1"); a("s_cmp_lg_u32 s48, 0"); a("s_cbranch_scc1 K2_LOOP")
    step(0, True, 18)
    if o.bal: step(1, True, 18)
    a("v_and_b32 v4, 15, v1"); a("v_lshrrev_b32 v5, 4, v1")
    a("s_lshl_b32 s55, s52, 6"); a("s_lshr_b32 s56, s3, 1"); a("s_lshl_b32 s56, s56, 5"); a("s_add_u32 s55, s55, s56")
    a("s_and_b32 s56, s3, 1"); a("s_add_u32 s55, s55, s56")
    a("v_lshlrev_b32 v6, 3, v4"); a("s_lshl_b32 s56, s55, 2")
    a("buffer_load_dword v88, v6, s[40:43], s56 offen")
    a("v_lshlrev_b32 v6, 4, v5"); a("v_lshlrev_b32 v7, 3, v5"); a("s_mul_i32 s57, s53, 160")
    a("buffer_load_dwordx4 v[92:95], v6, s[32:35], s57 offen")
    a("buffer_load_dwordx4 v[96:99], v6, s[32:35], s57 offen offset:64")
    a("buffer_load_dwordx2 v[100:101], v7, s[32:35], s57 offen offset:128")
    if o.bal: step(2, False, 22); step(3, False, 13); step(0, False, 4)
    else: step(1, False, 22); step(2, False, 13); step(3, False, 4)
    if o.stamps: a.stamp(1)
    a("v_mul_u32_u24 v4, 2560, v4"); a("v_add_u32 v6, v4, v6"); a("v_add_u32 v7, v4, v7")
    a("s_mul_i32 s56, s55, 1280"); a("s_add_u32 s56, s56, s57")
    a("s_mul_i32 s58, s3, 20480"); a("v_add_u32 v4, s58, v2")
    a("s_mul_i32 s58, s3, 5120"); a("v_add_u32 v5, s58, v2")
    a("s_nop 4")
    for i in range(4):
        for t in range(5): a(f"ds_write_b128 v4, {vr(ACC(i,t))} offset:{(i*5+t)*1024}")
    a("s_waitcnt lgkmcnt(0)"); a("s_barrier")
    P = lambda w, t: 8 + (w * 5 + t) * 4
    for w in range(3):
        for t in range(5): a(f"ds_read_b128 {vr(P(w,t))}, v5 offset:{w*20480+t*1024}")
    a("v_add_u32 v5, 61440, v5")
    a("s_waitcnt vmcnt(0)")
    for k in range(10):
        s = 92 + k
        a(f"v_lshlrev_b32 v{104+2*k}, 16, v{s}"); a(f"v_and_b32 v{105+2*k}, 0xffff0000, v{s}")
    a("s_waitcnt lgkmcnt(5)")
    for t in range(5): a(f"ds_read_b128 {vr(P(3,t))}, v5 offset:{t*1024}")
    if o.bal:
        for t in range(5): a(f"ds_read_b128 {vr(128+4*t)}, v5 offset:{20480+t*1024}")
    a("v_sub_f32 v89, 1.0, v88")
    B2 = lambda t, r: 104 + (t * 4 + r)
    for t in range(5):
        for r in range(4): a(f"v_add_f32 v{B2(t,r)}, v{B2(t,r)}, v{P(1,t)+r}")
    a(f"s_waitcnt lgkmcnt({10 if o.bal else 5})")
    for t in range(5):
        for r in range(4): a(f"v_add_f32 v{B2(t,r)}, v{B2(t,r)}, v{P(2,t)+r}")
    if not o.bal:
        for t in range(5):
            for r in range(4): a(f"v_mul_f32 v{P(0,t)+r}, v88, v{P(0,t)+r}")
    a(f"s_waitcnt lgkmcnt({5 if o.bal else 0})")
    for t in range(5):
        for r in range(4): a(f"v_add_f32 v{B2(t,r)}, v{B2(t,r)}, v{P(3,t)+r}")
    if o.bal:
        a("s_waitcnt lgkmcnt(0)")
        for t in range(5):
            for r in range(4): a(f"v_add_f32 v{P(0,t)+r}, v{P(0,t)+r}, v{128+4*t+r}")
        for t in range(5):
            for r in range(4): a(f"v_mul_f32 v{P(0,t)+r}, v88, v{P(0,t)+r}")
    for t in range(5):
        for r in range(4): a(f"v_fma_f32 v{B2(t,r)}, v89, v{B2(t,r)}, v{P(0,t)+r}")
    for k in range(10): a(f"v_cvt_pk_bf16_f32 v{8+k}, v{104+2*k}, v{105+2*k}")
    a(f"buffer_store_dwordx4 v[8:11], v6, s[44:47], s56 offen{o.osc}")
    a(f"buffer_store_dwordx4 v[12:15], v6, s[44:47], s56 offen offset:64{o.osc}")
    a(f"buffer_store_dwordx2 v[16:17], v7, s[44:47], s56 offen offset:128{o.osc}")
    if o.stamps:
        a.stamp(2); a("s_waitcnt vmcnt(0)"); a.stamp(3)
        a.dump_stamps(4, 1, 4, vtid="v0", tmp=("v20", "v21", "v22", "v23"))
    a("K2_EXIT:"); a("s_endpgm")

def k2v2(a, o):
    NB = o.nb
    a.begin("gm2_kernel", 256, 256, 147456 if o.k2dma else 81920, vgpr=128, agpr=36 * NB)
    a("s_cmp_ge_u32 s2, 256"); a("s_cbranch_scc1 K2_EXIT")
    if o.stamps: a.stamp(0)
    a("s_load_dwordx2 s[4:5], s[0:1], 88")
    a("s_load_dwordx2 s[6:7], s[0:1], 56")
    a("s_load_dwordx2 s[8:9], s[0:1], 72")
    a("v_and_b32 v1, 63, v0"); a("v_lshrrev_b32 v2, 6, v0")
    a("s_and_b32 s50, s2, 7"); a("s_lshr_b32 s51, s2, 3")
    a("v_readfirstlane_b32 s3, v2")
    a("s_lshr_b32 s52, s50, 1"); a("s_lshl_b32 s52, s52, 3"); a("s_lshr_b32 s55, s51, 2")
    a("s_and_b32 s53, s50, 1"); a("s_lshl_b32 s53, s53, 2"); a("s_and_b32 s54, s51, 3")
    if o.pf2:
        a("s_lshr_b32 s60, s51, 3"); a("s_mul_i32 s60, s60, 17")
        a("s_and_b32 s61, s51, 7"); a("s_add_u32 s61, s61, s52"); a("s_mul_i32 s61, s61, 68"); a("s_add_u32 s61, s61, s60"); a("s_lshl_b32 s61, s61, 12")
        a("s_bfe_u32 s62, s51, 0x20001"); a("s_add_u32 s62, s62, s53"); a("s_mul_i32 s62, s62, 68"); a("s_add_u32 s62, s62, s60"); a("s_mul_i32 s62, s62, 5120")
        a("s_and_b32 s63, s51, 1"); a("s_mul_i32 s63, s63, 2560"); a("s_add_u32 s62, s62, s63"); a(f"s_add_u32 s62, s62, {WS_B - 4096}")
        a("v_lshlrev_b32 v4, 7, v1"); a("v_cmp_gt_u32 vcc, 32, v1")
        a("v_mov_b32 v5, s62"); a("v_mov_b32 v6, s61"); a("v_cndmask_b32 v5, v5, v6, vcc"); a("v_add_u32 v4, v4, v5")
        a("v_mov_b32 v5, 5120"); a("v_mov_b32 v6, 4096"); a("v_cndmask_b32 v5, v5, v6, vcc")
        a("v_mul_u32_u24 v6, s3, v5"); a("v_add_u32 v4, v4, v6"); a("v_lshlrev_b32 v5, 2, v5")
    a("s_add_u32 s52, s52, s55"); a("s_add_u32 s53, s53, s54")
    a("s_mul_i32 s56, s3, 17")
    a("s_mul_i32 s36, s52, 68"); a("s_add_u32 s36, s36, s56"); a("s_lshl_b32 s36, s36, 12")
    a("s_mul_i32 s37, s53, 68"); a("s_add_u32 s37, s37, s56"); a("s_mul_i32 s37, s37, 5120")
    if o.rot2:
        a("s_add_u32 s38, s36, 69632"); a("s_mov_b32 s39, s36"); a("s_mov_b32 s49, s37")
        a("s_lshl_b32 s57, s55, 1"); a("s_lshl_b32 s58, s54, 2"); a("s_add_u32 s57, s57, s58")
        if o.rot2 == 2: a("s_lshl_b32 s57, s54, 2")
        if o.rot2 == 3: a("s_lshl_b32 s57, s55, 1")
        a("s_sub_u32 s58, s57, 17"); a("s_cmp_ge_u32 s57, 17"); a("s_cselect_b32 s57, s58, s57")
        a("s_lshl_b32 s58, s57, 12"); a("s_add_u32 s36, s36, s58"); a("s_mul_i32 s58, s57, 5120"); a("s_add_u32 s37, s37, s58")
    a("v_lshlrev_b32 v2, 4, v1"); a("v_add_u32 v3, 4096, v2")
    a("s_waitcnt lgkmcnt(0)")
    srd(a, 24, 4, WS_A, 32 * 68 * 4096); srd(a, 28, 4, WS_B, 8 * 68 * 5120)
    npf = 0
    if o.pf2:
        srd(a, 64, 4, 0, WS_B + 8 * 68 * 5120)
        a("s_mov_b32 exec_hi, 0xfffff")
        for k in range(5):
            if k == 4:
                a("s_cmp_lg_u32 s3, 0"); a("s_cbranch_scc1 K2_PFD")
            a(f"buffer_load_dword v{7}, v4, s[64:67], 0 offen")
            if k < 4: a("v_add_u32 v4, v4, v5")
        a("K2_PFD:")
        a("s_mov_b64 exec, -1")
        if o.pfw: a(f"s_waitcnt vmcnt({o.pfw - 1})");
        if o.pfw: a("s_barrier")
    BUF = lambda n: (n % NB) * 36
    def loads(n):
        b = BUF(n)
        L = []
        for t in range(5):
            L.append(f"buffer_load_dwordx4 {vr(b+16+4*t,4,'a')}, v{2 if t<4 else 3}, s[28:31], s37 offen offset:{(t%4)*1024}{o.l2f}")
        for i in range(4):
            L.append(f"buffer_load_dwordx4 {vr(b+4*i,4,'a')}, v2, s[24:27], s36 offen offset:{i*1024}{o.l2f}")
        order = [L[5], L[0], L[6], L[1], L[7], L[2], L[8], L[3], L[4]]
        if o.k2dma:
            lb = (n % NB) * 9216
            order = []
            for i in range(4):
                order.append(f"s_add_u32 m0, s75, {lb}\nbuffer_load_dwordx4 v2, s[24:27], s36 offen offset:{i*1024} lds")
                order.append(f"s_add_u32 m0, s75, {lb+4096}\nbuffer_load_dwordx4 v2, s[28:31], s37 offen offset:{i*1024} lds")
            order.append(f"s_add_u32 m0, s75, {lb+8192}\nbuffer_load_dwordx4 v3, s[28:31], s37 offen lds")
        return order
    if o.k2dma: a(f"s_mul_i32 s75, s3, {NB*9216}")
    def adv():
        a("s_add_u32 s36, s36, 4096"); a("s_add_u32 s37, s37, 5120")
        if o.rot2:
            a("s_cmp_eq_u32 s36, s38"); a("s_cselect_b32 s36, s39, s36"); a("s_cselect_b32 s37, s49, s37")
    if o.k2rep:
        a("s_mov_b32 s70, s36"); a("s_mov_b32 s71, s37"); a("s_mov_b32 s72, s26"); a("s_mov_b32 s73, s30"); a("s_mov_b32 s74, 0")
        a("K2_REP:")
    for n in range(NB - 1):
        for s in loads(n): a(s)
        adv()
    srd(a, 32, 6, 0, 1280); srd(a, 40, 4, WS_G, 8192); srd(a, 44, 8, 0, 2048 * 1280)
    a("v_and_b32 v4, 15, v1"); a("v_lshrrev_b32 v5, 4, v1")
    a("s_lshl_b32 s55, s52, 6"); a("s_lshr_b32 s56, s3, 1"); a("s_lshl_b32 s56, s56, 5"); a("s_add_u32 s55, s55, s56")
    a("s_and_b32 s56, s3, 1"); a("s_add_u32 s55, s55, s56")
    a("v_lshlrev_b32 v6, 3, v4"); a("s_lshl_b32 s56, s55, 2")
    a("v_lshlrev_b32 v90, 4, v5"); a("v_lshlrev_b32 v91, 3, v5"); a("s_mul_i32 s57, s53, 160")
    ACC = lambda i, t: 8 + (i * 5 + t) * 4
    for r in range(8, 88): a(f"v_mov_b32 v{r}, 0")
    W = 9 * (NB - 2)
    def step(n, wait):
        a(f"s_waitcnt vmcnt({wait})")
        b = BUF(n)
        L = loads(n + NB - 1)
        k = 0
        for t in range(5):
            for i in range(4):
                if not o.k2nomf: mfma(a, ACC(i, t), b + 16 + 4 * t, b + 4 * i, ACC(i, t))
                if k % 2 == 1 and L: a(L.pop(0))
                k += 1
        for s in L: a(s)
        adv()
    nreal = 17 - (NB - 1)
    a("s_mov_b32 s48, 0")
    a("K2_LOOP:")
    for n in range(NB):
        step(n, W)
        a("s_add_u32 s48, s48, 1")
        if nreal % NB == (n + 1) % NB:
            a(f"s_cmp_eq_u32 s48, {nreal}"); a("s_cselect_b32 s26, 0, s26"); a("s_cselect_b32 s30, 0, s30")
        if 17 % NB == (n + 1) % NB and n != NB - 1:
            a("s_cmp_eq_u32 s48, 17"); a("s_cbranch_scc1 K2_LEND")
    if 17 % NB == 0:
        a("s_cmp_lg_u32 s48, 17"); a("s_cbranch_scc1 K2_LOOP")
    else:
        a("s_branch K2_LOOP")
    a("K2_LEND:")
    if o.k2rep:
        a("s_cmp_lg_u32 s74, 0"); a("s_cbranch_scc1 K2_REPD")
        a("s_waitcnt vmcnt(0)"); a("s_barrier")
        a.stamp(4)
        a("s_mov_b32 s36, s70"); a("s_mov_b32 s37, s71"); a("s_mov_b32 s26, s72"); a("s_mov_b32 s30, s73"); a("s_mov_b32 s74, 1")
        a("s_branch K2_REP")
        a("K2_REPD:")
    a("buffer_load_dword v88, v6, s[40:43], s56 offen")
    a("buffer_load_dwordx4 v[92:95], v90, s[32:35], s57 offen")
    a("buffer_load_dwordx4 v[96:99], v90, s[32:35], s57 offen offset:64")
    a("buffer_load_dwordx2 v[100:101], v91, s[32:35], s57 offen offset:128")
    if o.stamps: a.stamp(1)
    a("v_mul_u32_u24 v4, 2560, v4"); a("v_add_u32 v6, v4, v90"); a("v_add_u32 v7, v4, v91")
    a("s_mul_i32 s56, s55, 1280"); a("s_add_u32 s56, s56, s57")
    a("s_mul_i32 s58, s3, 20480"); a("v_add_u32 v4, s58, v2")
    a("s_mul_i32 s58, s3, 5120"); a("v_add_u32 v5, s58, v2")
    a("s_nop 4")
    for i in range(4):
        for t in range(5): a(f"ds_write_b128 v4, {vr(ACC(i,t))} offset:{(i*5+t)*1024}")
    a("s_waitcnt lgkmcnt(0)"); a("s_barrier")
    P = lambda w, t: 8 + (w * 5 + t) * 4
    for w in range(3):
        for t in range(5): a(f"ds_read_b128 {vr(P(w,t))}, v5 offset:{w*20480+t*1024}")
    a("v_add_u32 v5, 61440, v5")
    a("s_waitcnt vmcnt(0)")
    for k in range(10):
        s = 92 + k
        a(f"v_lshlrev_b32 v{104+2*k}, 16, v{s}"); a(f"v_and_b32 v{105+2*k}, 0xffff0000, v{s}")
    a("s_waitcnt lgkmcnt(5)")
    for t in range(5): a(f"ds_read_b128 {vr(P(3,t))}, v5 offset:{t*1024}")
    a("v_sub_f32 v89, 1.0, v88")
    B2 = lambda t, r: 104 + (t * 4 + r)
    for t in range(5):
        for r in range(4): a(f"v_fma_f32 v{B2(t,r)}, v89, v{B2(t,r)}, v{P(0,t)+r}")
    for t in range(5):
        for r in range(4): a(f"v_add_f32 v{B2(t,r)}, v{B2(t,r)}, v{P(1,t)+r}")
    a("s_waitcnt lgkmcnt(5)")
    for t in range(5):
        for r in range(4): a(f"v_add_f32 v{B2(t,r)}, v{B2(t,r)}, v{P(2,t)+r}")
    a("s_waitcnt lgkmcnt(0)")
    for t in range(5):
        for r in range(4): a(f"v_add_f32 v{B2(t,r)}, v{B2(t,r)}, v{P(3,t)+r}")
    for k in range(10): a(f"v_cvt_pk_bf16_f32 v{8+k}, v{104+2*k}, v{105+2*k}")
    a(f"buffer_store_dwordx4 v[8:11], v6, s[44:47], s56 offen{o.osc}")
    a(f"buffer_store_dwordx4 v[12:15], v6, s[44:47], s56 offen offset:64{o.osc}")
    a(f"buffer_store_dwordx2 v[16:17], v7, s[44:47], s56 offen offset:128{o.osc}")
    if o.stamps:
        a.stamp(2); a("s_waitcnt vmcnt(0)"); a.stamp(3)
        a.dump_stamps(5 if o.k2rep else 4, 1, 4, vtid="v0", tmp=("v20", "v21", "v22", "v23"))
    a("K2_EXIT:"); a("s_endpgm")

def gen(o):
    global HALFREAD, GV
    HALFREAD = o.halfread; GV = o.gv
    a = Asm()
    k1(a, o); (k2v2 if o.k2v == 2 else k2)(a, o)
    a("CODE_END:")
    if o.k2dup: a.launch.append(a.launch[-1])
    if o.l1f: a.L = [l.replace("offen lds", "offen" + o.l1f + " lds") for l in a.L]
    if o.noload: a.L = [l for l in a.L if not (l.endswith("offen lds") and "s[68:71]" not in l)]
    return a.text()

if __name__ == "__main__":
    o = Opt()
    out = "gated_mix__sliding_local_dilated__dense_activation_gelu__prompt.s"
    for arg in sys.argv[1:]:
        if arg.startswith("out="): out = arg[4:]
        else:
            k, v = arg.split("=")
            cur = getattr(o, k)
            setattr(o, k, (" " + v.replace("+", " ") if v else "") if isinstance(cur, str) else type(cur)(int(v)))
    open(out, "w").write(gen(o))
```
